```python
import torch

def _softmax(x, axis=-1):
    return torch.softmax(x, dim=axis)
def _gelu(x):
    return torch.nn.functional.gelu(x, approximate="tanh")
def _silu(x):
    return torch.nn.functional.silu(x)
def _sigmoid(x):
    return torch.sigmoid(x)
def _layernorm(x, axis=-1, eps=1e-5):
    m = x.mean(dim=axis, keepdim=True)
    v = x.var(dim=axis, keepdim=True, unbiased=False)
    return (x - m) / torch.sqrt(v + eps)
def _scatter_add(tgt, idx, src, axis=0):
    return tgt.clone().index_add_(axis, idx, src)
def _segment_sum(src, seg, n):
    out = torch.zeros((n,) + src.shape[1:], dtype=src.dtype)
    return out.index_add_(0, seg, src)
def _pad(x, pw):
    flat = tuple(v for pair in reversed(pw) for v in pair)
    return torch.nn.functional.pad(x, flat)

kernel_name = 'recurrent_scan__linear_attn_block__dense_activation_squared_relu__prompt'

def setup_inputs():

    _w = (lambda a: (lambda t: t.to(torch.bfloat16) if t.is_floating_point() else t)(torch.as_tensor(a)))
    def _A_setup():
        B, S, D = 1, 2048, 512
        return {
            "x": _w((lambda *s: torch.randn(*s, dtype=torch.bfloat16) * 0.05)(B, S, D)),
            "wqkv": _w((lambda *s: torch.randn(*s, dtype=torch.bfloat16) * 0.05)(D, 3 * D)),
            "wo": _w((lambda *s: torch.randn(*s, dtype=torch.bfloat16) * 0.05)(D, D)),
        }
    _A_in = _A_setup()

    def _B_setup():
        B, S, D, F = 1, 2048, 512, 1792
        return {
            "x": _w((lambda *s: torch.randn(*s, dtype=torch.bfloat16) * 0.05)(B, S, D)),
            "w1": _w((lambda *s: torch.randn(*s, dtype=torch.bfloat16) * 0.05)(D, F)),
            "b1": _w((lambda *s: torch.randn(*s, dtype=torch.bfloat16) * 0.2)(F)),
            "w2": _w((lambda *s: torch.randn(*s, dtype=torch.bfloat16) * 0.05)(F, D)),
            "b2": _w((lambda *s: torch.randn(*s, dtype=torch.bfloat16) * 1.6)(D)),
        }
    _B_in = _B_setup()

    return {
        "A_x": _A_in["x"],
        "A_wqkv": _A_in["wqkv"],
        "A_wo": _A_in["wo"],
        "B_x": _B_in["x"],
        "B_w1": _B_in["w1"],
        "B_b1": _B_in["b1"],
        "B_w2": _B_in["w2"],
        "B_b2": _B_in["b2"],
    }

def reference(A_x, A_wqkv, A_wo, B_x, B_w1, B_b1, B_w2, B_b2):
    def _A_ref(x, wqkv, wo):
        B, S, D = x.shape
        H = 32; Dh = D // H
        qkv = (lambda x, *d: x.permute(*d))((x @ wqkv).reshape(B, S, 3, H, Dh), 2, 0, 3, 1, 4)
        q, k, v = qkv[0], qkv[1], qkv[2]
        phi = lambda t: torch.where(t > 0, t + 1, torch.exp(t)) + 1e-6
        pq, pk = phi(q), phi(k)
        kv = torch.einsum("bhsd,bhse->bhde", pk, v)
        z = torch.einsum("bhsd->bhd", pk)
        num = torch.einsum("bhqd,bhde->bhqe", pq, kv)
        den = torch.einsum("bhqd,bhd->bhq", pq, z)[..., None] + 1e-6
        o = num / den
        return (lambda x, *d: x.permute(*d))(o, 0, 2, 1, 3).reshape(B, S, D) @ wo

    def _B_ref(x, w1, b1, w2, b2):
        h = torch.einsum("bsd,df->bsf", x, w1) + b1
        zero = torch.zeros_like(h)
        r = torch.where(h > zero, h, zero)
        h = r * r
        out = torch.einsum("bsf,fd->bsd", h, w2) + b2
        return out

    x = A_x
    xn = _layernorm(x, axis=-1)
    s = _A_ref(xn, A_wqkv, A_wo)
    g = _silu(_B_ref(xn, B_w1, B_b1, B_w2, B_b2))
    return x + s * g
```

```python
import re

TRANS = ("v_exp_f32", "v_log_f32", "v_rcp_f32", "v_rsq_f32", "v_sqrt_f32", "v_sin_f32", "v_cos_f32")

def regs_of(tok):
    tok = tok.strip()
    if tok.startswith("-"): tok = tok[1:]
    m = re.match(r"^abs\((.*)\)$", tok)
    if m: tok = m.group(1)
    m = re.match(r"^([vas])(\d+)$", tok)
    if m: return [(m.group(1), int(m.group(2)))]
    m = re.match(r"^([vas])\[(\d+):(\d+)\]$", tok)
    if m: return [(m.group(1), i) for i in range(int(m.group(2)), int(m.group(3)) + 1)]
    if tok == "vcc": return [("s", 106), ("s", 107)]
    if tok == "vcc_lo": return [("s", 106)]
    if tok == "vcc_hi": return [("s", 107)]
    if tok == "exec": return [("s", 126), ("s", 127)]
    if tok == "exec_lo": return [("s", 126)]
    if tok == "exec_hi": return [("s", 127)]
    if tok == "m0": return [("s", 124)]
    return []

def split_ops(rest):
    parts = [p.strip() for p in rest.split(",")]
    ops = []
    mods = []
    for i, p in enumerate(parts):
        toks = p.split()
        if not toks: continue
        ops.append(toks[0])
        mods += toks[1:]
    return ops, mods

class Em:
    def __init__(self):
        self.lines = []
        self.clk = 0
        self.w = {}
        self.cread = {}
        self.sdata = {}
        self.vm_seq = 0; self.vm_done = 0
        self.lg_seq = 0; self.lg_done = 0
        self.pend = {}
        self.count = {}
        self.nbytes = 0
    def raw(self, text):
        self.lines.append(text)
    def comment(self, t):
        self.lines.append("; " + t)
    def label(self, name):
        self.lines.append(name + ":")
    def _out(self, text, states=1):
        self.lines.append("\t" + text)
        self.clk += states
        op = text.split()[0]
        self.count[op] = self.count.get(op, 0) + 1
    def nop(self, n):
        while n > 0:
            k = min(n, 16)
            self._out("s_nop %d" % (k - 1), k)
            n -= k
    def wait(self, vm=None, lg=None):
        parts = []
        if vm is not None and vm > self.vm_done:
            n = min(self.vm_seq - vm, 63)
            parts.append("vmcnt(%d)" % n)
            self.vm_done = max(self.vm_done, self.vm_seq - n)
            assert self.vm_done >= vm or self.vm_seq - vm > 63
            self.vm_done = max(self.vm_done, vm)
        if lg is not None and lg > self.lg_done:
            n = min(self.lg_seq - lg, 15)
            parts.append("lgkmcnt(%d)" % n)
            self.lg_done = max(self.lg_done, self.lg_seq - n, lg)
        if parts:
            self._out("s_waitcnt " + " ".join(parts))
    def wait_all(self):
        self.wait(vm=self.vm_seq, lg=self.lg_seq)
    def need(self, since, n):
        d = self.clk - since - 1
        return max(0, n - d)
    def __call__(self, text):
        text = text.strip()
        if "\n" in text:
            r = None
            for t in text.split("\n"):
                if t.strip(): r = self(t)
            return r
        sp = text.split(None, 1)
        op = sp[0]
        ops, mods = split_ops(sp[1]) if len(sp) > 1 else ([], [])
        R = []; W = []; kind = "salu"; A = B = C = D = None
        isdpp = any(m.startswith("row_") or m.startswith("quad_perm") for m in mods)
        if op.startswith("v_mfma"):
            kind = "mfma"
            D = regs_of(ops[0]); A = regs_of(ops[1]); B = regs_of(ops[2]); C = regs_of(ops[3])
            R = A + B + C; W = D
        elif op.startswith("ds_read"):
            kind = "ds"; W = regs_of(ops[0]); R = regs_of(ops[1])
        elif op.startswith("ds_"):
            kind = "ds"
            for o in ops: R += regs_of(o)
        elif op.startswith("buffer_load") or op.startswith("global_load"):
            kind = "vm"
            if "lds" in mods:
                for o in ops: R += regs_of(o)
                R += regs_of("m0")
            else:
                W = regs_of(ops[0])
                for o in ops[1:]: R += regs_of(o)
                if "d16" in op: R += W
        elif op.startswith("buffer_store") or op.startswith("global_store") or op.startswith("buffer_atomic"):
            kind = "vm"
            for o in ops: R += regs_of(o)
        elif op.startswith("v_"):
            kind = "valu"
            W = regs_of(ops[0])
            for o in ops[1:]: R += regs_of(o)
            if op.startswith("v_permlane"):
                W = W + regs_of(ops[1]); R = R + regs_of(ops[0])
            if op.startswith("v_dot2c") or op.startswith("v_fmac"):
                R = R + W
            if op.startswith("v_cndmask") and len(ops) == 3:
                R += regs_of("vcc")
            if isdpp: R = R + W
        elif op in ("s_waitcnt",):
            raise Exception("use wait()")
        elif op in ("s_barrier", "s_nop", "s_sleep", "s_setprio", "s_endpgm", "s_branch") or op.startswith("s_cbranch"):
            kind = "ctl"
        elif op.startswith("s_cmp") or op.startswith("s_bitcmp"):
            for o in ops: R += regs_of(o)
        elif op.startswith("s_load") or op.startswith("s_memtime") or op.startswith("s_memrealtime"):
            kind = "smem"; W = regs_of(ops[0])
            for o in ops[1:]: R += regs_of(o)
        else:
            W = regs_of(ops[0])
            for o in ops[1:]: R += regs_of(o)
            if "saveexec" in op: W += regs_of("exec"); R += regs_of("exec")
        vmw = None; lgw = None
        for r in R + W:
            p = self.pend.get(r)
            if p:
                if p[0] == "vm": vmw = max(vmw or 0, p[1])
                else: lgw = max(lgw or 0, p[1])
        self.wait(vm=vmw, lg=lgw)
        for r in R + W:
            self.pend.pop(r, None)
        n = 0
        opbase = op.replace("_e32", "").replace("_e64", "").replace("_dpp", "")
        for r in set(R):
            lw = self.w.get(r)
            if not lw: continue
            k, c, info = lw
            if k == "mfma":
                if kind == "mfma":
                    if r in A or r in B: n = max(n, self.need(c, 12))
                    if r in C:
                        if info != tuple(C): n = max(n, self.need(c, 10))
                else:
                    n = max(n, self.need(c, 12))
            elif k in ("valu", "trans", "dot"):
                if r[0] in "va":
                    if kind == "mfma": n = max(n, self.need(c, 2))
                    if op.startswith("v_permlane") or isdpp: n = max(n, self.need(c, 2))
                    if op.startswith("v_readfirstlane") or op.startswith("v_readlane"): n = max(n, self.need(c, 1))
                    if k == "trans" and kind == "valu" and opbase not in TRANS: n = max(n, self.need(c, 1))
                    if k == "trans" and kind != "valu": n = max(n, self.need(c, 1))
                    if k == "dot":
                        if not (opbase == info and r in W and r not in [x for o in ops[1:] for x in regs_of(o)]):
                            n = max(n, self.need(c, 3))
                else:
                    if kind == "valu": n = max(n, self.need(c, 2))
                    if kind == "vm": n = max(n, self.need(c, 5))
                    if kind == "salu": n = max(n, self.need(c, 1))
            elif k == "salu":
                if r == ("s", 124) and kind == "vm": n = max(n, self.need(c, 1))
        for r in set(W):
            lw = self.w.get(r)
            if lw:
                k, c, info = lw
                if k == "mfma" and kind != "mfma": n = max(n, self.need(c, 12))
                if k == "mfma" and kind == "mfma" and info != tuple(D): n = max(n, self.need(c, 12))
                if k == "dot" and not opbase == info: n = max(n, self.need(c, 3))
            if kind != "mfma" and r in self.cread: n = max(n, self.need(self.cread[r], 7))
            if r in self.sdata: n = max(n, self.need(self.sdata[r], 2))
        if n: self.nop(n)
        c = self.clk
        self._out(text)
        seq = None
        if kind == "vm":
            self.vm_seq += 1; seq = self.vm_seq
            for r in W: self.pend[r] = ("vm", seq)
            if op.startswith("buffer_store") or op.startswith("global_store"):
                d = regs_of(ops[0]) if op.startswith("buffer") else regs_of(ops[1])
                for r in d: self.sdata[r] = c
        elif kind == "ds":
            self.lg_seq += 1; seq = self.lg_seq
            for r in W: self.pend[r] = ("lg", seq)
            if op.startswith("ds_write"):
                for o in ops[1:]:
                    for r in regs_of(o): self.sdata[r] = c
        wk = kind
        info = None
        if kind == "valu":
            if opbase in TRANS: wk = "trans"
            elif opbase.startswith("v_dot"): wk = "dot"; info = opbase
        if kind == "mfma":
            info = tuple(D)
            for r in C: self.cread[r] = c
        for r in W:
            if kind in ("vm", "ds", "smem"): self.w.pop(r, None)
            else: self.w[r] = (wk, c, info)
        return seq
    def smem_wait(self):
        self._out("s_waitcnt lgkmcnt(0)")
        self.lg_done = self.lg_seq
    def barrier(self):
        self._out("s_barrier")
    def snapshot(self):
        import copy
        return copy.deepcopy((self.clk, self.w, self.cread, self.sdata, self.vm_seq, self.vm_done, self.lg_seq, self.lg_done, self.pend))
    def restore(self, s):
        import copy
        (self.clk, self.w, self.cread, self.sdata, self.vm_seq, self.vm_done, self.lg_seq, self.lg_done, self.pend) = copy.deepcopy(s)
    def text(self):
        return "\n".join(self.lines) + "\n"
```

```python
import sys
from em import Em

NAME = "recurrent_scan__linear_attn_block__dense_activation_squared_relu__prompt"

H_OFF = 0
KVP = 0x900000
ZP = 0x980000
FKV = 0x988000
FH = 0x989000
FO = 0x98B000
WS_BYTES = 0x990000
STAMP = 0x1000000
XW = 65536
MM = 131072
CSX = MM
CSX2 = MM + 4096
CV = MM + 8192
BV = MM + 12288
KVX = MM + 12288
RS = MM + 28672
ZX = MM + 29696
KVF = MM
LDS_BYTES = 163840
SX, SW, SW2, SWO, SWS, SOUT, SB1, SB2, SDBG = "s[4:7]", "s[8:11]", "s[12:15]", "s[16:19]", "s[20:23]", "s[24:27]", "s[28:31]", "s[32:35]", "s[36:39]"
sWAVE, sRB, sIJ, sROT, sRT, sCC, sSTRIDE = "s40", "s41", "s42", "s43", "s44", "s45", "s46"
sXB, sWA, sWB, sWH, sS64, sM0X, sM0WA, sM0WB, sM0WH = "s47", "s48", "s49", "s50", "s51", "s52", "s53", "s54", "s55"
st0, st1, st2, st3 = "s56", "s57", "s58", "s59"
sNONCE = "s[60:61]"
sHST = "s62"; sTYPE = "s63"
sMASK = "s[64:65]"; sONES = "s66"; sAB = "s67"; sBB = "s68"; sSPIN = "s69"
def sK0(t): return "s%d" % (70 + t)
sEPS6 = "s88"; sLOG2E = "s89"; sFL = "s90"; sFL2 = "s91"; sT0 = "s92"; st4 = "s93"; sTM = "s[94:95]"
sPC = "s[96:97]"
vL16 = "v1"
def vOX(q): return "v%d" % (2 + q)
def vOW(q): return "v%d" % (6 + q)
def vOB(q): return "v%d" % (10 + q)
vOH = "v14"
def vTW(s, cb): return "v%d" % (15 + 2 * s + cb)
def vXR(s): return "v%d" % (23 + s)
def vTH(s): return "v%d" % (27 + s)
vZERO = "v31"
ACCA, ACCB, BFR, XT = 32, 96, 144, 176
vSUM = [184, 185]; vSQ = [186, 187]; CSA = 188; CSB = 192
vNM, vRI = "v195", "v196"
vTB = ["v248", "v249"]; vA2 = "v250"; vPO = "v251"; vPD = 252; vNO = 254
AR = 32; ACCO = 96; ACCS = 160
PQ = 176

def vr(a, n=4): return "v[%d:%d]" % (a, a + n - 1)
def ar(a, n=4): return "a[%d:%d]" % (a, a + n - 1)

class Gen:
    def __init__(self, opt):
        self.o = opt
        self.e = Em()
        self.slow = []
        self.nlab = 0
        self.nstamp = 0
    def stamp(self, idx):
        if not self.o.get("stamps"): return
        e = self.e
        e.raw("\ts_memtime %s" % sTM)
        e.smem_wait()
        e("s_sub_u32 s94, s94, %s" % sT0)
        e("v_mov_b32 v%d, s94" % vPD)
        e("s_lshl_b32 s94, s2, 9")
        e("s_lshl_b32 s95, %s, 7" % sWAVE)
        e("s_add_u32 s94, s94, s95")
        e("s_add_u32 s94, s94, %d" % (STAMP + idx * 4))
        e("s_mov_b64 exec, 1")
        e("buffer_store_dword v%d, %s, %s, s94 offen" % (vPD, vZERO, SWS))
        e("s_mov_b64 exec, -1")
    def poll_issue(self, voff, soff_expr_emit):
        e = self.e
        soff_expr_emit(sFL)
        e("buffer_load_dwordx2 v[%d:%d], %s, %s, %s offen sc1" % (vPD, vPD + 1, voff, SWS, sFL))
        self.poll_voff = voff
    def poll_check(self):
        e = self.e
        self.nlab += 1
        n = self.nlab
        e("v_cmp_eq_u64 vcc, %s, v[%d:%d]" % (sNONCE, vPD, vPD + 1))
        e("s_cmp_eq_u64 vcc, exec")
        e("s_cbranch_scc0 L_slow%d" % n)
        e.label("L_back%d" % n)
        s = []
        s.append("L_slow%d:" % n)
        s.append("\ts_mov_b32 %s, 0" % sSPIN)
        s.append("L_spin%d:" % n)
        s.append("\ts_sleep 1")
        s.append("\tbuffer_load_dwordx2 v[%d:%d], %s, %s, %s offen sc1" % (vPD, vPD + 1, self.poll_voff, SWS, sFL))
        s.append("\ts_waitcnt vmcnt(0)")
        s.append("\tv_cmp_eq_u64 vcc, %s, v[%d:%d]" % (sNONCE, vPD, vPD + 1))
        s.append("\ts_add_u32 %s, %s, 1" % (sSPIN, sSPIN))
        s.append("\ts_cmp_eq_u64 vcc, exec")
        s.append("\ts_cbranch_scc1 L_back%d" % n)
        s.append("\ts_cmp_lt_u32 %s, 0x8000" % sSPIN)
        s.append("\ts_cbranch_scc1 L_spin%d" % n)
        s.append("\ts_branch L_back%d" % n)
        self.slow += s
    def flag_store(self, soff):
        e = self.e
        e("s_mov_b64 exec, 1")
        e("buffer_store_dwordx2 v[%d:%d], %s, %s, %s offen sc1" % (vNO, vNO + 1, vZERO, SWS, soff))
        e("s_mov_b64 exec, -1")
    def prologue(self):
        e = self.e; o = self.o
        e("s_cmp_ge_u32 s2, 256")
        e("s_cbranch_scc1 L_exit")
        if o.get("stamps"):
            e.raw("\ts_memtime %s" % sTM)
        e("s_load_dwordx16 s[64:79], s[0:1], 0")
        e("s_load_dwordx4 s[80:83], s[0:1], 64")
        e("s_load_dwordx2 s[84:85], s[0:1], 80")
        e.raw("\ts_getpc_b64 %s" % sPC)
        e.label("L_pc")
        e("v_lshrrev_b32 v2, 6, v0")
        e("s_lshr_b32 %s, s2, 3" % st3)
        e("v_readfirstlane_b32 %s, v2" % sWAVE)
        e("s_and_b32 %s, %s, 3" % (st0, st3))
        e("s_lshl_b32 %s, %s, 15" % (st0, st0))
        e("v_lshlrev_b32 v2, 7, v0")
        e("v_add_u32 v2, %s, v2" % st0)
        e("v_min_u32 v2, L_end-L_pc-4, v2")
        e("global_load_dword v247, v2, %s" % sPC)
        e("v_and_b32 v0, 63, v0")
        e("s_and_b32 %s, s2, 7" % st2)
        e("s_lshr_b32 %s, %s, 2" % (sRB, st2))
        e("s_lshl_b32 %s, %s, 3" % (sRB, sRB))
        e("s_and_b32 %s, %s, 7" % (st0, st3))
        e("s_add_u32 %s, %s, %s" % (sRB, sRB, st0))
        e("s_lshr_b32 %s, %s, 3" % (st1, st3))
        e("s_lshr_b32 %s, %s, 1" % (sTYPE, st1))
        e("s_and_b32 %s, %s, 3" % (sIJ, st2))
        e("s_lshl_b32 %s, %s, 1" % (sIJ, sIJ))
        e("s_and_b32 %s, %s, 1" % (sROT, st1))
        e("s_add_u32 %s, %s, %s" % (sIJ, sIJ, sROT))
        rmode = o.get("rot", 8)
        if rmode == 8:
            e("s_lshl_b32 %s, %s, 1" % (sROT, st1))
            e("s_add_u32 %s, %s, %s" % (sROT, sROT, st0))
            e("s_and_b32 %s, %s, 7" % (sROT, sROT))
        elif rmode == 0:
            e("s_mov_b32 %s, 0" % sROT)
        elif rmode == 2:
            e("s_add_u32 %s, %s, %s" % (sROT, st0, st1))
            e("s_and_b32 %s, %s, 1" % (sROT, sROT))
            e("s_lshl_b32 %s, %s, 2" % (sROT, sROT))
            e("s_add_u32 %s, %s, %s" % (sROT, sROT, st2))
            e("s_and_b32 %s, %s, 7" % (sROT, sROT))
        if o.get("p2", "4x8") == "4x8":
            e("s_lshl_b32 %s, %s, 2" % (sRT, st2))
            e("s_and_b32 %s, %s, 3" % (st0, st3))
            e("s_add_u32 %s, %s, %s" % (sRT, sRT, st0))
            e("s_lshr_b32 %s, %s, 2" % (sCC, st3))
        else:
            e("s_lshr_b32 %s, %s, 1" % (sRT, st2))
            e("s_lshl_b32 %s, %s, 3" % (sRT, sRT))
            e("s_and_b32 %s, %s, 7" % (st0, st3))
            e("s_add_u32 %s, %s, %s" % (sRT, sRT, st0))
            e("s_and_b32 %s, %s, 1" % (sCC, st2))
            e("s_lshl_b32 %s, %s, 2" % (sCC, sCC))
            e("s_lshr_b32 %s, %s, 3" % (st0, st3))
            e("s_add_u32 %s, %s, %s" % (sCC, sCC, st0))
        e("s_movk_i32 %s, 3072" % sSTRIDE)
        e("s_cmp_eq_u32 %s, 0" % sTYPE)
        e("s_cselect_b32 %s, %s, 3584" % (sSTRIDE, sSTRIDE))
        e("v_lshlrev_b32 %s, 4, v0" % vL16)
        e("v_lshrrev_b32 v32, 3, v0")
        e("v_and_b32 v33, 7, v0")
        e("v_lshrrev_b32 v34, 4, v0")
        e("v_xor_b32 v35, v33, v34")
        e("v_lshlrev_b32 v35, 4, v35")
        e("v_lshl_add_u32 %s, v32, 10, v35" % vOX(0))
        e("v_xor_b32 v36, 64, %s" % vOX(0))
        e("v_add_u32 %s, 7168, v36" % vOX(1))
        e("v_add_u32 %s, 14336, %s" % (vOX(2), vOX(0)))
        e("v_add_u32 %s, 21504, v36" % vOX(3))
        e("v_and_b32 v35, 16, v0")
        e("v_lshrrev_b32 v35, 2, v35")
        e("v_xor_b32 v35, v33, v35")
        e("v_lshlrev_b32 v35, 4, v35")
        e("v_mul_lo_u32 v36, v32, %s" % sSTRIDE)
        e("v_add_u32 %s, v36, v35" % vOW(0))
        e("s_lshl_b32 %s, %s, 3" % (st0, sSTRIDE))
        e("s_sub_u32 %s, %s, 1024" % (st0, st0))
        for q in range(1, 4):
            e("v_add_u32 %s, %s, %s" % (vOW(q), st0, vOW(q - 1)))
        e("v_lshl_add_u32 %s, v32, 10, v35" % vOB(0))
        for q in range(1, 4):
            e("v_add_u32 %s, 7168, %s" % (vOB(q), vOB(q - 1)))
        e("s_lshl_b32 %s, %s, 2" % (st0, sRB))
        e("s_add_u32 %s, %s, %s" % (st0, st0, sWAVE))
        e("s_lshl_b32 %s, %s, 15" % (sXB, st0))
        e("s_mul_i32 %s, %s, %d" % (sHST, st0, 144 * 1024))
        e("s_lshl_b32 %s, %s, 6" % (sS64, sSTRIDE))
        e("s_lshl_b32 %s, %s, 14" % (sM0X, sWAVE))
        e("s_add_u32 %s, %s, %d" % (sM0X, sM0X, XW))
        e("s_lshl_b32 %s, %s, 12" % (sM0WA, sWAVE))
        e("s_lshl_b32 %s, %s, 11" % (sM0WB, sWAVE))
        e("s_lshl_b32 %s, %s, 10" % (sM0WH, sWAVE))
        e("s_add_u32 %s, %s, 8192" % (sM0WH, sM0WH))
        e("s_lshr_b32 %s, %s, 1" % (st0, sWAVE))
        e("s_lshr_b32 %s, %s, 1" % (st1, sIJ))
        e("s_mul_i32 %s, %s, 7" % (st1, st1))
        e("s_and_b32 %s, %s, 1" % (st2, sIJ))
        e("s_lshl_b32 %s, %s, 6" % (sWH, st2))
        e("s_add_u32 %s, %s, 3" % (st3, st1))
        e("s_lshl_b32 %s, %s, 7" % (st3, st3))
        e("s_add_u32 %s, %s, %s" % (sWH, sWH, st3))
        e("s_lshl_b32 %s, %s, 2" % (st2, st2))
        e("s_add_u32 %s, %s, %s" % (st1, st1, st2))
        e("s_lshl_b32 %s, %s, 7" % (st4, st1))
        e("s_add_u32 %s, %s, 256" % (sWB, st4))
        e("s_lshl_b32 %s, %s, 7" % (st2, st0))
        e("s_add_u32 %s, %s, %s" % (sWA, st4, st2))
        e("s_lshl_b32 %s, %s, 7" % (st1, sIJ))
        e("s_lshl_b32 %s, %s, 10" % (st2, st0))
        e("s_add_u32 %s, %s, %s" % (st2, st2, st1))
        e("s_add_u32 %s, %s, 1024" % (st2, st2))
        e("s_cmp_eq_u32 %s, 0" % sTYPE)
        e("s_cselect_b32 %s, %s, %s" % (sWA, st2, sWA))
        e("s_cselect_b32 %s, %s, %s" % (sWB, st1, sWB))
        e("s_mov_b32 %s, %s" % (sFL2, sWH))
        e("s_and_b32 %s, %s, 1" % (st0, sWAVE))
        e("s_lshl_b32 %s, %s, 5" % (st0, st0))
        e("s_mul_i32 %s, %s, %s" % (st0, st0, sSTRIDE))
        e("s_add_u32 %s, %s, %s" % (sWA, sWA, st0))
        e("s_lshl_b32 %s, %s, 4" % (st0, sWAVE))
        e("s_mul_i32 %s, %s, %s" % (st0, st0, sSTRIDE))
        e("s_add_u32 %s, %s, %s" % (sWB, sWB, st0))
        e("s_add_u32 %s, %s, %s" % (sWH, sWH, st0))
        e.smem_wait()
        if o.get("stamps"):
            e("s_mov_b32 %s, s94" % sT0)
        def srd(base, lo, hi, nbytes):
            e("s_mov_b32 s%d, s%d" % (base, lo))
            e("s_and_b32 s%d, s%d, 0xffff" % (base + 1, hi))
            e("s_mov_b32 s%d, %d" % (base + 2, nbytes))
            e("s_mov_b32 s%d, 0x20000" % (base + 3))
        srd(4, 64, 65, 2097152)
        e("s_cmp_eq_u32 %s, 0" % sTYPE)
        e("s_cselect_b32 s8, s66, s72")
        e("s_cselect_b32 s9, s67, s73")
        e("s_mov_b32 s10, 1572864")
        e("s_cselect_b32 s10, s10, 1835008")
        e("s_and_b32 s9, s9, 0xffff")
        e("s_mov_b32 s11, 0x20000")
        self.vm_chunk = {}
        self.dma_chunk(0)
        srd(36, 82, 83, 256)
        srd(20, 84, 85, WS_BYTES if not o.get("stamps") else STAMP + 256 * 512)
        e("v_mov_b32 %s, 0" % vZERO)
        e("s_or_b32 %s, s2, %s" % (st0, sWAVE))
        e("s_cmp_lg_u32 %s, 0" % st0)
        e("s_cbranch_scc1 L_nonce_done")
        e.raw("\ts_memrealtime %s" % sNONCE)
        e.smem_wait()
        e("s_or_b32 s61, s61, 0x80000000")
        e("v_mov_b32 v%d, s60" % vNO)
        e("v_mov_b32 v%d, s61" % (vNO + 1))
        e("s_mov_b64 exec, 1")
        e.raw("\tbuffer_store_dwordx2 v[%d:%d], %s, %s, 0 offen sc1" % (vNO, vNO + 1, vZERO, SDBG))
        e.raw("\ts_waitcnt vmcnt(0)")
        e("s_mov_b64 exec, -1")
        e.label("L_nonce_done")
        self.dma_chunk(1)
        srd(12, 76, 77, 1835008)
        srd(16, 68, 69, 524288)
        srd(24, 80, 81, 2097152)
        srd(28, 74, 75, 3584)
        srd(32, 78, 79, 1024)
        e("v_and_b32 v32, 3, v0")
        e("v_bfe_u32 v33, v0, 2, 2")
        e("v_bfe_u32 v34, v0, 4, 1")
        e("v_lshrrev_b32 v35, 5, v0")
        e("v_lshl_add_u32 v36, v35, 3, v33")
        e("v_and_b32 v37, 2, v33")
        e("v_xor_b32 v37, v37, v34")
        e("v_lshlrev_b32 v37, 5, v37")
        e("v_lshl_add_u32 v37, v32, 3, v37")
        e("v_lshl_add_u32 v38, v36, 7, v37")
        e("v_lshlrev_b32 v39, 5, v34")
        e("v_lshl_add_u32 v39, v32, 3, v39")
        e("v_lshl_add_u32 v39, v36, 6, v39")
        e("v_add_u32 v39, 8192, v39")
        e("v_and_b32 v40, 31, v0")
        e("v_bfe_u32 v41, v0, 1, 3")
        e("v_xor_b32 v41, v41, v35")
        e("v_lshlrev_b32 v41, 4, v41")
        e("v_lshl_add_u32 v41, v40, 7, v41")
        e("v_add_u32 v41, %s, v41" % sM0X)
        for s in range(4):
            e("s_add_u32 %s, %s, %d" % (st0, sWAVE, s))
            e("s_and_b32 %s, %s, 3" % (st0, st0))
            e("s_lshl_b32 %s, %s, 11" % (st1, st0))
            e("v_add_u32 %s, %s, v38" % (vTW(s, 0), st1))
            e("v_xor_b32 %s, 64, %s" % (vTW(s, 1), vTW(s, 0)))
            e("s_lshl_b32 %s, %s, 10" % (st1, st0))
            e("v_add_u32 %s, %s, v39" % (vTH(s), st1))
            e("s_lshl_b32 %s, %s, 5" % (st1, st0))
            e("v_xor_b32 %s, %s, v41" % (vXR(s), st1))
        e("v_lshl_add_u32 v36, v35, 2, v33")
        e("v_lshl_add_u32 v36, v36, 7, v37")
        e("v_add_u32 %s, %s, v36" % (vTB[0], sM0X))
        e("v_xor_b32 %s, 64, %s" % (vTB[1], vTB[0]))
        e("v_add_u32 %s, %d, %s" % (vA2, 144 * 1024, vL16))
        e("v_lshrrev_b32 v36, 2, v0")
        e("v_mul_u32_u24 v36, 3584, v36")
        e("v_lshl_add_u32 %s, v32, 4, v36" % vOH)
        e("v_and_b32 v36, 2, v0")
        e("v_lshlrev_b32 v36, 5, v36")
        e("v_and_b32 v37, 1, v0")
        e("v_lshl_add_u32 %s, v37, 3, v36" % vPO)
        e("s_mov_b32 s64, 0xffff0000")
        e("s_mov_b32 s65, 0xffff0000")
        e("s_mov_b32 %s, 0x3f803f80" % sONES)
        e("s_mov_b32 %s, 0x358637bd" % sEPS6)
        e("s_mov_b32 %s, 0x3fb8aa3b" % sLOG2E)
        e("s_mul_i32 %s, %s, %d" % (sAB, sRT, 288 * 1024))
        e("s_lshl_b32 %s, %s, 7" % (sBB, sCC))
        e("s_mul_i32 %s, %s, 28" % (st0, sWAVE))
        p2rot = o.get("p2rot", 1)
        for t in range(8):
            if p2rot:
                e("s_add_u32 %s, %s, %d" % (st1, sCC, t))
                e("s_and_b32 %s, %s, 7" % (st1, st1))
                e("s_and_b32 %s, %s, 4" % (st2, st1))
                e("s_add_u32 %s, %s, %s" % (st1, st1, st2))
                e("s_lshl_b32 %s, %s, 1" % (st1, st1))
                e("s_add_u32 %s, %s, %s" % (sK0(t), st0, st1))
            else:
                e("s_add_u32 %s, %s, %d" % (sK0(t), st0, 2 * t + (8 if t >= 4 else 0)))
        for t in range(6):
            if p2rot:
                e("s_add_u32 %s, %s, %d" % (st1, sCC, t))
                e("s_cmp_ge_u32 %s, 12" % st1)
                e("s_cselect_b32 %s, 12, 0" % st2)
                e("s_sub_u32 %s, %s, %s" % (st1, st1, st2))
                e("s_cmp_ge_u32 %s, 6" % st1)
                e("s_cselect_b32 %s, 6, 0" % st2)
                e("s_sub_u32 %s, %s, %s" % (st1, st1, st2))
                e("s_and_b32 %s, %s, 4" % (st2, st1))
                e("s_add_u32 %s, %s, %s" % (st1, st1, st2))
                e("s_lshl_b32 %s, %s, 1" % (st1, st1))
                e("s_add_u32 %s, %s, %s" % (st1, st1, st0))
                e("s_add_u32 %s, %s, 8" % (sK0(8 + t), st1))
            else:
                e("s_add_u32 %s, %s, %d" % (sK0(8 + t), st0, 8 + 2 * t + (8 if t >= 4 else 0)))
        e("s_lshl_b32 %s, %s, 3" % (st0, sWAVE))
        e("s_add_u32 %s, %s, 112" % (st0, st0))
        for t in range(4):
            if p2rot:
                e("s_add_u32 %s, %s, %d" % (st1, sCC, t))
                e("s_and_b32 %s, %s, 3" % (st1, st1))
                e("s_lshl_b32 %s, %s, 1" % (st1, st1))
                e("s_add_u32 %s, %s, %s" % (sK0(14 + t), st0, st1))
            else:
                e("s_add_u32 %s, %s, %d" % (sK0(14 + t), st0, 2 * t))
        for r in vSUM + vSQ + list(range(CSA, CSA + 4)) + list(range(CSB, CSB + 3)):
            e("v_mov_b32 v%d, 0" % r)
        e("s_cmp_eq_u32 %s, 0" % sTYPE)
        e("s_cbranch_scc0 L_typeB")
    def dma_items(self, c, typ=None):
        it = []
        slot = c & 3
        it.append("s_add_u32 %s, %s, %d" % (st0, sROT, c & 7))
        it.append("s_and_b32 %s, %s, 7" % (st0, st0))
        it.append("s_mul_i32 %s, %s, %s" % (st1, st0, sS64))
        if c < 8:
            it.append("s_lshl_b32 %s, %s, 7" % (st0, st0))
            it.append("s_add_u32 %s, %s, %s" % (st2, st0, sXB))
            it.append("s_add_u32 m0, %s, %d" % (sM0X, slot * 4096))
            it.append("s_add_u32 %s, %s, %s" % (st3, st1, sWA))
            for q in range(4):
                it.append("buffer_load_dwordx4 %s, %s, %s offen offset:%d lds" % (vOX(q), SX, st2, q * 1024))
            it.append("s_add_u32 m0, %s, %d" % (sM0WA, slot * 16384))
            for q in range(4):
                it.append("buffer_load_dwordx4 %s, %s, %s offen offset:%d lds" % (vOW(q), SW, st3, q * 1024))
        else:
            it.append("s_add_u32 m0, %s, %d" % (sM0WB, slot * 16384))
            it.append("s_add_u32 %s, %s, %s" % (st3, st1, sWB))
            for q in range(2):
                it.append("buffer_load_dwordx4 %s, %s, %s offen offset:%d lds" % (vOW(q), SW, st3, q * 1024))
            if typ == "B":
                it.append("s_add_u32 m0, %s, %d" % (sM0WH, slot * 16384))
                it.append("s_add_u32 %s, %s, %s" % (st3, st1, sWH))
                it.append("buffer_load_dwordx4 %s, %s, %s offen lds" % (vOH, SW, st3))
        it.append(("mark", "chunk", c))
        return it
    def run(self, item):
        e = self.e
        if isinstance(item, str): e(item)
        elif callable(item): item()
        elif item[0] == "mark":
            self.marks[(item[1], item[2])] = (e.vm_seq, e.lg_seq)
        elif item[0] == "waitvm":
            e.wait(vm=self.marks[(item[1], item[2])][0])
        elif item[0] == "waitlg":
            e.wait(lg=self.marks[(item[1], item[2])][1])
    marks = {}
    def dma_chunk(self, c, typ=None):
        for it in self.dma_items(c, typ): self.run(it)
    def piece_dma(self, t):
        it = []
        if t >= 4: it.append(("waitlg", "ptr", t - 4))
        if t < 14:
            it.append("s_lshl_b32 s3, %s, 14" % (sK0(t)))
            srd = SW2
        else:
            it.append("s_sub_u32 s3, %s, 112" % (sK0(t)))
            it.append("s_lshl_b32 s3, s3, 14")
            srd = SWO
        it.append("s_add_u32 m0, %s, %d" % (sM0X, (t & 3) * 4096))
        it.append("s_add_u32 s3, s3, %s" % (sBB))
        for q in range(4):
            it.append("buffer_load_dwordx4 %s, %s, s3 offen offset:%d lds" % (vOB(q), srd, q * 1024))
        it.append(("mark", "pdma", t))
        return it
    def pslot(self, t):
        k = t & 15
        return 128 + 16 * k if k < 8 else 16 * (k - 8)
    def piece_tr(self, t):
        it = [("waitvm", "pdma", t)]
        b = self.pslot(t)
        for u in range(2):
            for cb in range(2):
                for tt in range(2):
                    it.append("ds_read_b64_tr_b16 %s, %s offset:%d" % (ar(b + 8 * u + 4 * cb + 2 * tt, 2), vTB[cb], (t & 3) * 4096 + u * 2048 + tt * 1024))
        it.append(("mark", "ptr", t))
        return it
    def frag_reads(self, n, typ):
        c, s = n >> 2, n & 3
        slot = c & 3
        buf = BFR + 16 * (n & 1)
        first = []
        groups = []
        if n < 32:
            first.append("ds_read_b128 %s, %s offset:%d" % (ar(4 * n), vXR(s), slot * 4096))
            ncb = 4
        else:
            ncb = 3 if typ == "B" else 2
        for i in range(ncb):
            g = []
            for t in range(2):
                if n >= 32 and i == 2:
                    g.append("ds_read_b64_tr_b16 %s, %s offset:%d" % (vr(buf + 4 * i + 2 * t, 2), vTH(s), slot * 16384 + t * 256))
                else:
                    g.append("ds_read_b64_tr_b16 %s, %s offset:%d" % (vr(buf + 4 * i + 2 * t, 2), vTW(s, i & 1), slot * 16384 + (i >> 1) * 8192 + t * 512))
            groups.append(g)
        groups[0] = first + groups[0]
        if n < 32:
            groups[-1].append("ds_read_b128 %s, %s offset:%d" % (vr(XT + 4 * (n & 1)), vXR(s), slot * 4096))
        return groups
    def step_mfmas(self, n, typ):
        buf = BFR + 16 * (n & 1)
        out = []
        if n < 32:
            x = ar(4 * n); acc = ACCA; ncb = 4; firstn = 0
        else:
            x = ar(4 * (n - 32)); acc = ACCB; ncb = 3 if typ == "B" else 2; firstn = 32
        for i in range(ncb):
            d = vr(acc + 16 * i, 16)
            cin = "0" if n == firstn else d
            w = vr(buf + 4 * i)
            if typ == "A" and n < 32: out.append("v_mfma_f32_32x32x16_bf16 %s, %s, %s, %s" % (d, x, w, cin))
            else: out.append("v_mfma_f32_32x32x16_bf16 %s, %s, %s, %s" % (d, w, x, cin))
        return out
    def step_valu(self, n, typ):
        it = []
        buf = BFR + 16 * (n & 1)
        if (n & 3) == 0:
            ncb = 4 if n < 32 else (3 if typ == "B" else 2)
            cs = CSA if n < 32 else CSB
            for j in range(4):
                for i in range(ncb):
                    it.append("v_dot2c_f32_bf16 v%d, %s, v%d" % (cs + i, sONES, buf + 4 * i + j))
        if n < 32:
            xt = XT + 4 * (n & 1)
            for j in range(4):
                it.append("v_dot2c_f32_bf16 v%d, %s, v%d" % (vSUM[j & 1], sONES, xt + j))
                it.append("v_dot2c_f32_bf16 v%d, v%d, v%d" % (vSQ[j & 1], xt + j, xt + j))
        return it
    def gemm1(self, typ, fill):
        e = self.e
        e.wait(vm=self.marks[("chunk", 0)][0])
        e.barrier()
        self.stamp(1)
        for g in self.frag_reads(0, typ):
            for it in g: self.run(it)
        q = []
        for n in range(64):
            c, s = n >> 2, n & 3
            if n == 32: self.stamp(2)
            mf = self.step_mfmas(n, typ)
            rd = self.frag_reads(n + 1, typ) if n < 63 else []
            own = self.step_valu(n, typ)
            if s == 0 and c + 2 < 16:
                self.dq = self.dma_items(c + 2, typ)
            nd = {0: 11 if c + 2 < 8 else 7, 1: len(self.dq), 2: len(self.dq), 3: 0}[s]
            own = own + self.dq[:nd]; self.dq = self.dq[nd:]
            q += fill.get(n, [])
            rate = fill["rate"](n)
            take = q[:rate]; q = q[rate:]
            extra = own + take
            k = len(mf)
            per = [(len(extra) * (i + 1)) // k - (len(extra) * i) // k for i in range(k)]
            pos = 0
            for i in range(k):
                self.run(mf[i])
                if i == 0 and s == 3:
                    for it in fill.get(("prebar", c), []): self.run(it)
                    if c < 15: e.wait(vm=self.marks[("chunk", c + 1)][0])
                    else: e.wait(lg=e.lg_seq)
                    e.barrier()
                    q = fill.get(("postbar", c), []) + q
                gs = []
                if rd:
                    if len(rd) == k: gs = rd[i]
                    else:
                        gs = rd[i] if i < len(rd) else []
                for it in gs: self.run(it)
                for it in extra[pos:pos + per[i]]: self.run(it)
                pos += per[i]
        return q
    def stats_final(self):
        it = []
        t0, t1, t2 = "v197", "v198", "v199"
        it.append("v_add_f32 v%d, v%d, v%d" % (vSUM[0], vSUM[0], vSUM[1]))
        it.append("v_add_f32 v%d, v%d, v%d" % (vSQ[0], vSQ[0], vSQ[1]))
        it.append("v_mov_b32 v%d, v%d" % (vSUM[1], vSUM[0]))
        it.append("v_mov_b32 v%d, v%d" % (vSQ[1], vSQ[0]))
        it.append("v_permlane32_swap_b32 v%d, v%d" % (vSUM[0], vSUM[1]))
        it.append("v_permlane32_swap_b32 v%d, v%d" % (vSQ[0], vSQ[1]))
        it.append("v_add_f32 v%d, v%d, v%d" % (vSUM[0], vSUM[0], vSUM[1]))
        it.append("v_add_f32 v%d, v%d, v%d" % (vSQ[0], vSQ[0], vSQ[1]))
        it.append("v_mul_f32 %s, 0x3b000000, v%d" % (t0, vSUM[0]))
        it.append("v_mul_f32 %s, 0x3b000000, v%d" % (t1, vSQ[0]))
        it.append("v_fma_f32 %s, -%s, %s, %s" % (t1, t0, t0, t1))
        it.append("v_max_f32 %s, 0, %s" % (t1, t1))
        it.append("v_cvt_pk_bf16_f32 %s, %s, %s" % (t2, t0, t1))
        it.append("v_lshlrev_b32 %s, 16, %s" % (t0, t2))
        it.append("v_and_b32 %s, 0xffff0000, %s" % (t1, t2))
        it.append("v_sub_f32 %s, 0, %s" % (vNM, t0))
        it.append("v_add_f32 %s, 0x3727c5ac, %s" % (t1, t1))
        it.append("v_cvt_pk_bf16_f32 %s, %s, %s" % (t1, t1, t1))
        it.append("v_lshlrev_b32 %s, 16, %s" % (t1, t1))
        it.append("v_sqrt_f32 %s, %s" % (t1, t1))
        it.append("v_cvt_pk_bf16_f32 %s, %s, %s" % (t1, t1, t1))
        it.append("v_lshlrev_b32 %s, 16, %s" % (t1, t1))
        it.append("v_rcp_f32 %s, %s" % (vRI, t1))
        return it
    def cs_write(self, base, cs, key):
        return ["s_lshl_b32 %s, %s, 10" % (st4, sWAVE),
                "v_add_u32 v197, %s, %s" % (st4, vL16),
                "v_add_u32 v197, %d, v197" % base,
                "ds_write_b128 v197, %s" % vr(cs),
                ("mark", "csw", key)]
    def cs_final(self, base, cs, ncb, tmp):
        it = ["v_add_u32 v197, %d, %s" % (base, vL16)]
        for w in range(4):
            it.append("ds_read_b128 %s, v197 offset:%d" % (vr(tmp + 4 * w), w * 1024))
        for i in range(ncb):
            it.append("v_add_f32 v%d, v%d, v%d" % (tmp + i, tmp + i, tmp + 4 + i))
            it.append("v_add_f32 v%d, v%d, v%d" % (tmp + 8 + i, tmp + 8 + i, tmp + 12 + i))
        for i in range(ncb):
            it.append("v_add_f32 v%d, v%d, v%d" % (cs + i, tmp + i, tmp + 8 + i))
        for i in range(ncb):
            it.append("v_mov_b32 v%d, v%d" % (tmp + i, cs + i))
        for i in range(ncb):
            it.append("v_permlane32_swap_b32 v%d, v%d" % (cs + i, tmp + i))
        for i in range(ncb):
            it.append("v_add_f32 v%d, v%d, v%d" % (cs + i, cs + i, tmp + i))
        return it
    def cv_write(self, cs, ncb, cb0):
        it = ["s_lshl_b32 %s, %s, 10" % (st4, sWAVE),
              "s_add_u32 %s, %s, %d" % (st4, st4, CV),
              "v_and_b32 v198, 31, v0",
              "v_lshl_add_u32 v198, v198, 2, %s" % st4,
              "v_lshrrev_b32 v199, 5, v0",
              "v_lshl_add_u32 v199, v199, 4, %s" % st4]
        for i in range(ncb):
            it.append("ds_write_b32 v198, v%d offset:%d" % (cs + i, (cb0 + i) * 128))
        return it
    def get_nonce(self):
        e = self.e
        def issue():
            e("buffer_load_dwordx2 v[%d:%d], %s, %s, 0 offen sc1" % (vNO, vNO + 1, vZERO, SDBG))
        def check():
            self.nlab += 1; n = self.nlab
            e("v_readfirstlane_b32 s61, v%d" % (vNO + 1))
            e("v_readfirstlane_b32 s60, v%d" % vNO)
            e("s_cmp_eq_u32 s61, 0")
            e("s_cbranch_scc1 L_slow%d" % n)
            e.label("L_back%d" % n)
            self.slow += ["L_slow%d:" % n, "\ts_mov_b32 %s, 0" % sSPIN, "L_spin%d:" % n, "\ts_sleep 1",
                          "\tbuffer_load_dwordx2 v[%d:%d], %s, %s, 0 offen sc1" % (vNO, vNO + 1, vZERO, SDBG),
                          "\ts_waitcnt vmcnt(0)",
                          "\tv_readfirstlane_b32 s61, v%d" % (vNO + 1), "\tv_readfirstlane_b32 s60, v%d" % vNO,
                          "\ts_add_u32 %s, %s, 1" % (sSPIN, sSPIN), "\ts_nop 4",
                          "\ts_cmp_lg_u32 s61, 0", "\ts_cbranch_scc1 L_back%d" % n,
                          "\ts_cmp_lt_u32 %s, 0x8000" % sSPIN, "\ts_cbranch_scc1 L_spin%d" % n,
                          "\ts_branch L_back%d" % n]
        return issue, check
    def h_epi(self, acc0, cbs, kst):
        C, Bv, P = 200, 216, 232
        it = []
        def rd(cb, g):
            return ["ds_read_b128 %s, v199 offset:%d" % (vr(C + 4 * g), cb * 128 + g * 32),
                    "ds_read_b128 %s, v199 offset:%d" % (vr(Bv + 4 * g), (BV - CV) + cb * 128 + g * 32)]
        for g in range(4): it += rd(cbs[0], g)
        for ci, cb in enumerate(cbs):
            a = acc0 + 16 * ci
            for g in range(4):
                for j in range(4): it.append("v_fmac_f32 v%d, %s, v%d" % (a + 4 * g + j, vNM, C + 4 * g + j))
                for j in range(4): it.append("v_fmac_f32 v%d, %s, v%d" % (Bv + 4 * g + j, vRI, a + 4 * g + j))
                for j in range(4): it.append("v_max_f32 v%d, 0, v%d" % (a + 4 * g + j, Bv + 4 * g + j))
                for j in range(4): it.append("v_mul_f32 v%d, v%d, v%d" % (a + 4 * g + j, a + 4 * g + j, Bv + 4 * g + j))
                if ci + 1 < len(cbs): it += rd(cbs[ci + 1], g)
                for j in range(2): it.append("v_cvt_pk_bf16_f32 v%d, v%d, v%d" % (P + 2 * g + j, a + 4 * g + 2 * j, a + 4 * g + 2 * j + 1))
                if g & 1:
                    so, imm = kst(cb)
                    it.append("buffer_store_dwordx4 %s, %s, %s, %s offen offset:%d sc1" % (vr(P + 4 * (g >> 1)), vL16, SWS, so, imm + (g >> 1) * 1024))
        return it
    def b1_load(self):
        it = ["v_lshlrev_b32 v200, 1, v0",
              "buffer_load_ushort v201, v200, %s, %s offen" % (SB1, st4),
              "buffer_load_ushort v202, v200, %s, %s offen offset:128" % (SB1, st4),
              "buffer_load_ushort v203, v200, %s, %s offen offset:256" % (SB1, st4),
              "buffer_load_ushort v204, v200, %s, %s offen" % (SB1, sFL2)]
        it2 = ["s_lshl_b32 %s, %s, 10" % (st4, sWAVE),
               "s_add_u32 %s, %s, %d" % (st4, st4, BV),
               "v_lshl_add_u32 v200, v0, 2, %s" % st4]
        for q in range(4):
            it2.append("v_lshlrev_b32 v%d, 16, v%d" % (201 + q, 201 + q))
            it2.append("ds_write_b32 v200, v%d offset:%d" % (201 + q, q * 256))
        return it, it2
    def phi(self, a, t, pre):
        return pre + ["v_mul_f32 %s, %s, v%d" % (t, sLOG2E, a),
                      "v_max_f32 v%d, %s, v%d" % (a, sEPS6, a),
                      "v_exp_f32_e64 %s, %s clamp" % (t, t),
                      "v_add_f32 v%d, v%d, %s" % (a, a, t)]
    def zipper(self, seqs):
        out = []
        n = max(len(s) for s in seqs)
        for i in range(n):
            for s in seqs:
                if i < len(s): out.append(s[i])
        return out
    def a_loads(self, n):
        t, u = n >> 1, n & 1
        it = []
        if u == 0:
            it.append("s_lshl_b32 %s, %s, 10" % (sFL2, sK0(t)))
            it.append("s_add_u32 %s, %s, %s" % (sFL2, sFL2, sAB))
        b = AR + 8 * (n & 7)
        it.append("buffer_load_dwordx4 %s, %s, %s, %s offen offset:%d sc1" % (vr(b), vL16, SWS, sFL2, u * 1024))
        it.append("buffer_load_dwordx4 %s, %s, %s, %s offen offset:%d sc1" % (vr(b + 4), vA2, SWS, sFL2, u * 1024))
        return it
    def p2_mfmas(self, n):
        t, u = n >> 1, n & 1
        b = AR + 8 * (n & 7)
        pb = self.pslot(t) + 8 * u
        acc = ACCO if n < 28 else ACCS
        out = []
        for rbk in range(2):
            for cbk in range(2):
                d = vr(acc + 32 * rbk + 16 * cbk, 16)
                cin = "0" if n in (0, 28) else d
                out.append("v_mfma_f32_32x32x16_bf16 %s, %s, %s, %s" % (d, ar(pb + 4 * cbk), vr(b + 4 * rbk), cin))
        return out
    def poll_fh(self, stage):
        def so(r):
            e = self.e
            e("s_lshl_b32 %s, %s, 8" % (r, sRT))
            e("s_lshl_b32 s3, %s, 4" % (sWAVE))
            e("s_add_u32 %s, %s, s3" % (r, r))
            e("s_add_u32 %s, %s, %d" % (r, r, FH + stage * 128))
        return lambda: self.poll_issue(vPO, so)
    def poll_fo(self):
        def so(r):
            e = self.e
            e("s_lshl_b32 %s, %s, 7" % (r, sRT))
            e("s_lshl_b32 s3, %s, 4" % (sWAVE))
            e("s_add_u32 %s, %s, s3" % (r, r))
            e("s_add_u32 %s, %s, %d" % (r, r, FO))
        return lambda: self.poll_issue(vPO, so)
    def ex_addr(self):
        it = ["v_and_b32 v8, 31, v0", "v_lshrrev_b32 v9, 5, v0", "v_and_b32 v14, 7, v0",
              "v_xor_b32 v9, v9, v14", "v_lshlrev_b32 v9, 4, v9", "v_lshl_add_u32 v9, v8, 8, v9",
              "s_lshl_b32 %s, %s, 14" % (st4, sWAVE), "v_add_u32 v2, %s, v9" % st4]
        for g in range(1, 4): it.append("v_xor_b32 v%d, %d, v2" % (2 + g, g * 32))
        it += ["v_lshrrev_b32 v8, 3, v0", "v_lshlrev_b32 v9, 1, v14", "v_xor_b32 v9, v9, v8", "v_lshlrev_b32 v9, 4, v9",
               "v_lshl_add_u32 v9, v8, 8, v9", "s_lshl_b32 %s, %s, 12" % (st4, sWAVE), "v_add_u32 v6, %s, v9" % st4,
               "v_xor_b32 v7, 16, v6", "v_add_u32 v28, %d, v6" % XW, "v_add_u32 v29, %d, v7" % XW,
               "v_add_u32 v30, %d, v2" % XW]
        return it
    def ex_write(self, acc, base_regs_plus):
        it = []
        for rbk in range(2):
            for cbk in range(2):
                for g in range(4):
                    it.append("ds_write_b128 %s, %s offset:%d" % (base_regs_plus[g], vr(acc + 32 * rbk + 16 * cbk + 4 * g), rbk * 8192 + cbk * 128))
        return it
    def res_loads(self):
        return ["v_lshrrev_b32 v8, 3, v0", "v_and_b32 v9, 7, v0", "v_lshlrev_b32 v9, 4, v9", "v_lshl_add_u32 v15, v8, 10, v9",
                "s_lshl_b32 %s, %s, 2" % (st4, sRT), "s_add_u32 %s, %s, %s" % (st4, st4, sWAVE), "s_lshl_b32 %s, %s, 14" % (st4, st4),
                "s_add_u32 %s, %s, %s" % (sXB, st4, sBB),
                "s_add_u32 %s, %s, 8192" % (sWA, sXB),
                "buffer_load_dwordx4 v[16:19], v15, %s, %s offen" % (SX, sXB),
                "buffer_load_dwordx4 v[20:23], v15, %s, %s offen" % (SX, sWA),
                "buffer_load_dwordx4 v[24:27], v9, %s, %s offen" % (SB2, sBB)]
    def p2(self, typ, pre_done_pieces_dma, pre_done_pieces_tr, hooks):
        e = self.e
        D = 7
        nd, nt = pre_done_pieces_dma, pre_done_pieces_tr
        q = []
        na = hooks.get("a_issued", 0)
        def gate(n):
            if n == 16: return [self.poll_check]
            if n == 28: return [self.poll_check]
            return []
        while na < D:
            for it in gate(na) + self.a_loads(na): self.run(it)
            na += 1
        for n in range(36):
            t = n >> 1
            extra = []
            if nt <= min(17, t + 2) or (nt < 16 and nt < nd and (n & 1) == 0):
                if nt < 18 and nt < nd and (nt < 16 or n >= 2 * (nt - 16) + 2):
                    extra += self.piece_tr(nt); nt += 1
            if nd < 18 and nd - nt < 4 and (n & 1) == 1:
                extra += self.piece_dma(nd); nd += 1
            assert nt > t, (n, nt)
            if na < 36:
                if na + 2 == 16: extra.append(self.poll_fh(1))
                if na + 2 == 28: extra.append(self.poll_fo())
                extra += gate(na) + self.a_loads(na); na += 1
            q += hooks.get(n, [])
            rate = hooks.get("rate", lambda n: 12)(n)
            extra += q[:rate]; q = q[rate:]
            mf = self.p2_mfmas(n)
            k = 4
            per = [(len(extra) * (i + 1)) // k - (len(extra) * i) // k for i in range(k)]
            pos = 0
            for i in range(k):
                self.run(mf[i])
                for it in extra[pos:pos + per[i]]: self.run(it)
                pos += per[i]
        for it in q: self.run(it)
    def final(self):
        e = self.e
        for it in self.ex_write(ACCS, ["v30", "v8", "v9", "v14"]): self.run(it)
        e.wait(lg=e.lg_seq)
        e.barrier()
        self.stamp(6)
        O, S = 32, 96
        for q in range(2):
            for b in range(2):
                for w in range(4):
                    e("ds_read_b128 %s, v%d offset:%d" % (vr(O + 32 * q + 16 * b + 4 * w), 6 + b, w * 16384 + q * 2048))
        for q in range(2):
            for b in range(2):
                for w in range(4):
                    e("ds_read_b128 %s, v%d offset:%d" % (vr(S + 32 * q + 16 * b + 4 * w), 28 + b, w * 16384 + q * 2048))
        for j in range(4):
            e("v_lshlrev_b32 v%d, 16, v%d" % (160 + 2 * j, 24 + j))
            e("v_and_b32 v%d, 0xffff0000, v%d" % (161 + 2 * j, 24 + j))
        for q in range(2):
            for j in range(4):
                e("v_lshlrev_b32 v%d, 16, v%d" % (168 + 8 * q + 2 * j, 16 + 4 * q + j))
                e("v_and_b32 v%d, 0xffff0000, v%d" % (169 + 8 * q + 2 * j, 16 + 4 * q + j))
        e("s_mov_b32 %s, 0xbfb8aa3b" % st0)
        for q in range(2):
            for b in range(2):
                o0 = O + 32 * q + 16 * b
                for j in range(4): e("v_add_f32 v%d, v%d, v%d" % (o0 + j, o0 + j, o0 + 4 + j))
                for j in range(4): e("v_add_f32 v%d, v%d, v%d" % (o0 + 8 + j, o0 + 8 + j, o0 + 12 + j))
                for j in range(4): e("v_add_f32 v%d, v%d, v%d" % (o0 + j, o0 + j, 160 + 4 * b + j))
                for j in range(4): e("v_add_f32 v%d, v%d, v%d" % (o0 + j, o0 + j, o0 + 8 + j))
                for j in range(4): e("v_mul_f32 v%d, %s, v%d" % (o0 + 4 + j, st0, o0 + j))
                for j in range(4): e("v_exp_f32 v%d, v%d" % (o0 + 4 + j, o0 + 4 + j))
                for j in range(4): e("v_add_f32 v%d, 1.0, v%d" % (o0 + 4 + j, o0 + 4 + j))
                for j in range(4): e("v_rcp_f32 v%d, v%d" % (o0 + 4 + j, o0 + 4 + j))
                for j in range(4): e("v_mul_f32 v%d, v%d, v%d" % (o0 + j, o0 + j, o0 + 4 + j))
        for q in range(2):
            for b in range(2):
                o0 = O + 32 * q + 16 * b; s0 = S + 32 * q + 16 * b
                for j in range(4): e("v_add_f32 v%d, v%d, v%d" % (s0 + j, s0 + j, s0 + 4 + j))
                for j in range(4): e("v_add_f32 v%d, v%d, v%d" % (s0 + 8 + j, s0 + 8 + j, s0 + 12 + j))
                for j in range(4): e("v_add_f32 v%d, v%d, v%d" % (s0 + j, s0 + j, s0 + 8 + j))
                for j in range(4): e("v_fmac_f32 v%d, v%d, v%d" % (168 + 8 * q + 4 * b + j, s0 + j, o0 + j))
            for j in range(4): e("v_cvt_pk_bf16_f32 v%d, v%d, v%d" % (184 + 4 * q + j, 168 + 8 * q + 2 * j, 169 + 8 * q + 2 * j))
            e("buffer_store_dwordx4 %s, v15, %s, %s offen" % (vr(184 + 4 * q), SOUT, sXB if q == 0 else sWA))
        self.stamp(7)
        e("s_endpgm")
    def path_B(self):
        e = self.e; o = self.o
        e.label("L_typeB")
        b1a, b1b = self.b1_load()
        for it in b1a: self.run(it)
        nissue, ncheck = self.get_nonce()
        fill = {"rate": lambda n: 6 if n < 32 else 16}
        fill[2] = b1b
        fill[8] = [nissue]
        fill[16] = [ncheck]
        fill[29] = self.cs_write(CSX, CSA, 0)
        fill[("prebar", 7)] = [("waitlg", "csw", 0)]
        kA = ["s_lshr_b32 %s, %s, 1" % (st4, sIJ), "s_mul_i32 %s, %s, 28" % (st4, st4), "s_and_b32 %s, %s, 1" % (sXB, sIJ),
              "s_lshl_b32 %s, %s, 1" % (sFL2, sXB), "s_add_u32 %s, %s, %s" % (sFL2, sFL2, st4), "s_add_u32 %s, %s, 12" % (sFL2, sFL2),
              "s_lshl_b32 %s, %s, 10" % (sFL2, sFL2), "s_add_u32 s98, %s, %s" % (sFL2, sHST),
              "s_lshl_b32 %s, %s, 4" % (sXB, sXB), "s_add_u32 %s, %s, %s" % (st4, st4, sXB), "s_lshl_b32 %s, %s, 10" % (st4, st4),
              "s_add_u32 s99, %s, %s" % (st4, sHST), "s_add_u32 s100, s99, 4096", "s_add_u32 s101, s99, 8192"]
        def kst(cb):
            if cb < 2: return "s99", cb * 2048
            if cb < 4: return "s100", (cb - 2) * 2048
            if cb < 6: return "s101", (cb - 4) * 2048
            return "s98", 0
        def flag_h(stage):
            return [("waitvm", "hst", stage),
                    "s_lshl_b32 %s, %s, 2" % (st4, sRB), "s_add_u32 %s, %s, %s" % (st4, st4, sWAVE),
                    "s_lshr_b32 %s, %s, 1" % (sXB, st4), "s_lshl_b32 %s, %s, 8" % (sXB, sXB),
                    "s_and_b32 %s, %s, 1" % (st4, st4), "s_lshl_b32 %s, %s, 6" % (st4, st4), "s_add_u32 %s, %s, %s" % (sXB, sXB, st4),
                    "s_lshl_b32 %s, %s, 3" % (st4, sIJ), "s_add_u32 %s, %s, %s" % (sXB, sXB, st4),
                    "s_add_u32 %s, %s, %d" % (sXB, sXB, FH + stage * 128),
                    lambda: self.flag_store(sXB)]
        fill[32] = (kA + self.stats_final() + self.cs_final(CSX, CSA, 4, 200) + self.cv_write(CSA, 4, 0)
                    + self.h_epi(ACCA, [0, 1, 2, 3], kst) + [("mark", "hst", 0)])
        pd = {24: 0, 26: 1, 28: 2, 33: 3, 37: 4, 40: 5, 43: 6, 46: 7, 49: 8, 52: 9, 55: 10, 58: 11}
        pt = {34: 0, 36: 1, 39: 2, 42: 3, 45: 4, 48: 5, 51: 6, 54: 7}
        self.front = {}
        for n, t in pd.items(): self.front.setdefault(n, []).extend(self.piece_dma(t))
        for n, t in pt.items(): self.front.setdefault(n, []).extend(self.piece_tr(t))
        self.front.setdefault(60, []).extend(flag_h(0))
        fill[61] = self.cs_write(CSX2, CSB, 1)
        self.merge_front(fill)
        rest = self.gemm1(typ="B", fill=fill)
        self.stamp(3)
        for it in rest: self.run(it)
        self.poll_fh(0)()
        items = self.cs_final(CSX2, CSB, 3, 200) + self.cv_write(CSB, 3, 4)
        for it in items: self.run(it)
        self.poll_check()
        pre = []
        for n in range(7): pre.append(self.a_loads(n))
        for t in range(8, 12): pre.append(self.piece_tr(t)); pre.append(self.piece_dma(t + 4))
        items = self.h_epi(ACCB, [4, 5, 6], kst) + [("mark", "hst", 1)]
        k = 0
        for i, it in enumerate(items):
            if i % 12 == 0 and k < len(pre):
                for x in pre[k]: self.run(x)
                k += 1
            self.run(it)
        for p in pre[k:]:
            for x in p: self.run(x)
        self.stamp(4)
        hooks = {"a_issued": 7}
        hooks[2] = flag_h(1)
        hooks[6] = self.ex_addr() + self.res_loads()
        hooks[29] = self.ex_write(ACCO, ["v2", "v3", "v4", "v5"]) + ["v_xor_b32 v8, 32, v30", "v_xor_b32 v9, 64, v30", "v_xor_b32 v14, 96, v30"]
        self.p2("B", 16, 12, hooks)
        self.stamp(5)
        self.final()
    def merge_front(self, fill):
        base = self.step_valu
        front = self.front
        def sv(n, typ): return front.get(n, []) + base(n, typ)
        self.step_valu = sv
        self._sv_base = base
    def unmerge_front(self):
        self.step_valu = self._sv_base
    def path_A(self):
        e = self.e; o = self.o
        nissue, ncheck = self.get_nonce()
        fill = {"rate": lambda n: 6 if n < 32 else 22}
        fill[8] = [nissue]
        fill[16] = [ncheck]
        fill[29] = self.cs_write(CSX, CSA, 0)
        fill[("prebar", 7)] = [("waitlg", "csw", 0)]
        NM, RI, PK, VV = 200, 216, 232, 240
        it = self.stats_final()
        it += ["s_lshl_b32 %s, %s, 8" % (st4, sWAVE), "s_add_u32 %s, %s, %d" % (st4, st4, RS),
               "v_and_b32 v198, 31, v0", "v_lshl_add_u32 v198, v198, 2, %s" % st4,
               "v_lshrrev_b32 v199, 5, v0", "v_lshl_add_u32 v199, v199, 4, %s" % st4,
               "ds_write_b32 v198, %s" % vNM, "ds_write_b32 v198, %s offset:128" % vRI]
        it += self.cs_final(CSX, CSA, 4, 200)
        for g in range(4):
            it.append("ds_read_b128 %s, v199 offset:%d" % (vr(NM + 4 * g), g * 32))
            it.append("ds_read_b128 %s, v199 offset:%d" % (vr(RI + 4 * g), 128 + g * 32))
        it += ["s_lshl_b32 %s, %s, 12" % (st4, sWAVE), "s_add_u32 %s, %s, %d" % (st4, st4, KVX),
               "v_add_u32 v198, %s, %s" % (st4, vL16),
               "s_lshl_b32 %s, %s, 8" % (st4, sWAVE), "s_add_u32 %s, %s, %d" % (st4, st4, ZX),
               "v_lshrrev_b32 v199, 5, v0", "v_lshl_add_u32 v199, v199, 4, %s" % st4]
        for j in range(4): it.append("v_mov_b32 v%d, %s" % (XT + j, sONES))
        tt = ["v%d" % (XT + 4 + j) for j in range(4)]
        for p in range(2):
            ak = ACCA + 16 * p; av = ACCA + 32 + 16 * p
            for g in range(4):
                seqs = []
                for j in range(4):
                    r = 4 * g + j
                    seqs.append(self.phi(ak + r, tt[j], ["v_fmac_f32 v%d, v%d, v%d" % (ak + r, NM + r, CSA + p),
                                                         "v_fma_f32 v%d, v%d, v%d, %s" % (ak + r, ak + r, RI + r, sEPS6)]))
                it += self.zipper(seqs)
                for j in range(4): it.append("v_fmac_f32 v%d, v%d, v%d" % (av + 4 * g + j, NM + 4 * g + j, CSA + 2 + p))
                for j in range(2): it.append("v_cvt_pk_bf16_f32 v%d, v%d, v%d" % (PK + 2 * g + j, ak + 4 * g + 2 * j, ak + 4 * g + 2 * j + 1))
                for j in range(4): it.append("v_mul_f32 v%d, v%d, v%d" % (av + 4 * g + j, av + 4 * g + j, RI + 4 * g + j))
                for j in range(2): it.append("v_cvt_pk_bf16_f32 v%d, v%d, v%d" % (VV + 2 * g + j, av + 4 * g + 2 * j, av + 4 * g + 2 * j + 1))
            it.append("v_mfma_f32_32x32x16_bf16 %s, %s, %s, 0" % (vr(ak, 16), vr(PK), vr(VV)))
            it.append("v_mfma_f32_32x32x16_bf16 %s, %s, %s, 0" % (vr(av, 16), vr(PK), vr(XT)))
            it.append("v_mfma_f32_32x32x16_bf16 %s, %s, %s, %s" % (vr(ak, 16), vr(PK + 4), vr(VV + 4), vr(ak, 16)))
            it.append("v_mfma_f32_32x32x16_bf16 %s, %s, %s, %s" % (vr(av, 16), vr(PK + 4), vr(XT), vr(av, 16)))
            post = []
            for i in range(8): post.append("v_cndmask_b32 v%d, v%d, v%d, %s" % (ak + i, ak + i, ak + 8 + i, sMASK))
            for part in range(2): post.append("ds_write_b128 v198, %s offset:%d" % (vr(ak + 4 * part), p * 2048 + part * 1024))
            post.append("s_mov_b64 exec, s[98:99]")
            for g in range(4): post.append("ds_write_b128 v199, %s offset:%d" % (vr(av + 4 * g), (2 * p + (g >> 1)) * 64 + (g & 1) * 32))
            post.append("s_mov_b64 exec, -1")
            if p == 0: post0 = post
            else: it += post0 + post
        it.append(("mark", "kvw", 0))
        it = ["s_mov_b32 s98, 1", "s_mov_b32 s99, 1"] + it
        fill[32] = [lambda x=x: self.run(x) for x in []] + it
        fill[32] = self.group_exec(fill[32])
        KB = o.get("kvbar", 13)
        fill[("prebar", KB)] = [lambda: self.drain_q(), ("waitlg", "kvw", 0)]
        T = 200
        red = ["v_and_b32 v197, 15, v0", "v_bfe_u32 v198, v0, 4, 1", "v_lshl_add_u32 v197, v198, 5, v197",
               "s_and_b32 %s, %s, 1" % (st4, sWAVE), "s_lshl_b32 %s, %s, 4" % (st4, st4), "v_add_u32 v197, %s, v197" % st4,
               "v_lshlrev_b32 v197, 4, v197", "v_lshrrev_b32 v198, 5, v0", "v_lshl_add_u32 v197, v198, 10, v197",
               "s_lshr_b32 %s, %s, 1" % (st4, sWAVE), "s_lshl_b32 %s, %s, 11" % (st4, st4), "s_add_u32 %s, %s, %d" % (st4, st4, KVX),
               "v_add_u32 v197, %s, v197" % st4,
               "v_lshrrev_b32 v198, 4, v0", "s_lshl_b32 %s, %s, 6" % (st4, sWAVE), "s_add_u32 %s, %s, %d" % (st4, st4, ZX),
               "v_lshl_add_u32 v199, v198, 4, %s" % st4]
        for w in range(4): red.append("ds_read_b128 %s, v197 offset:%d" % (vr(T + 4 * w), w * 4096))
        for w in range(4): red.append("ds_read_b128 %s, v199 offset:%d" % (vr(T + 16 + 4 * w), w * 256))
        red += ["s_lshl_b32 %s, %s, 2" % (st4, sIJ), "s_add_u32 s100, %s, %s" % (st4, sWAVE),
                "s_lshl_b32 %s, s100, 4" % st4, "s_add_u32 %s, %s, %s" % (st4, st4, sRB),
                "s_lshl_b32 %s, %s, 10" % (sXB, st4), "s_add_u32 %s, %s, %d" % (sXB, sXB, KVP),
                "s_lshl_b32 %s, %s, 6" % (sWA, st4), "s_add_u32 %s, %s, %d" % (sWA, sWA, ZP),
                "v_lshlrev_b32 v198, 4, v198"]
        for b in (T, T + 16):
            for j in range(4): red.append("v_add_f32 v%d, v%d, v%d" % (b + j, b + j, b + 4 + j))
            for j in range(4): red.append("v_add_f32 v%d, v%d, v%d" % (b + 8 + j, b + 8 + j, b + 12 + j))
            for j in range(4): red.append("v_add_f32 v%d, v%d, v%d" % (b + j, b + j, b + 8 + j))
        red.append("buffer_store_dwordx4 %s, %s, %s, %s offen sc1" % (vr(T), vL16, SWS, sXB))
        def zst():
            e("s_mov_b32 s98, 0x00010001"); e("s_mov_b32 s99, 0x00010001")
            e("s_mov_b64 exec, s[98:99]")
            e("buffer_store_dwordx4 %s, v198, %s, %s offen sc1" % (vr(T + 16), SWS, sWA))
            e("s_mov_b64 exec, -1")
        red.append(zst)
        red.append(("mark", "kvst", 0))
        fill[("postbar", KB)] = red
        flag_kv = [("waitvm", "kvst", 0), "s_lshl_b32 %s, s100, 7" % sXB, "s_lshl_b32 %s, %s, 3" % (st4, sRB),
                   "s_add_u32 %s, %s, %s" % (sXB, sXB, st4), "s_add_u32 %s, %s, %d" % (sXB, sXB, FKV), lambda: self.flag_store(sXB)]
        pd = {24: 0, 26: 1, 28: 2, 33: 3, 37: 4, 40: 5, 43: 6, 46: 7, 49: 8, 52: 9, 55: 10, 58: 11}
        pt = {34: 0, 36: 1, 39: 2, 42: 3, 45: 4, 48: 5, 51: 6, 54: 7}
        self.front = {}
        for n, t in pd.items(): self.front.setdefault(n, []).extend(self.piece_dma(t))
        for n, t in pt.items(): self.front.setdefault(n, []).extend(self.piece_tr(t))
        fill[61] = self.cs_write(CSX2, CSB, 1)
        self.merge_front(fill)
        rest = self.gemm1(typ="A", fill=fill)
        self.unmerge_front()
        self.stamp(3)
        for x in rest: self.run(x)
        for x in flag_kv: self.run(x)
        self.poll_fh(0)()
        for x in self.cs_final(CSX2, CSB, 2, 200) + self.cv_write(CSB, 2, 0): self.run(x)
        self.poll_check()
        C = 200
        items = []
        for cb in range(2):
            for g in range(4): items.append("ds_read_b128 %s, v199 offset:%d" % (vr(C + 16 * cb + 4 * g), cb * 128 + g * 32))
        tt = ["v232", "v233", "v234", "v235"]
        for cb in range(2):
            a = ACCB + 16 * cb
            for g in range(4):
                seqs = []
                for j in range(4):
                    r = 4 * g + j
                    seqs.append(self.phi(a + r, tt[j], ["v_fmac_f32 v%d, %s, v%d" % (a + r, vNM, C + 16 * cb + r),
                                                        "v_fma_f32 v%d, v%d, %s, %s" % (a + r, a + r, vRI, sEPS6)]))
                items += self.zipper(seqs)
                for j in range(2): items.append("v_cvt_pk_bf16_f32 v%d, v%d, v%d" % (PQ + 8 * cb + 2 * g + j, a + 4 * g + 2 * j, a + 4 * g + 2 * j + 1))
        pre = []
        for n in range(7): pre.append(self.a_loads(n))
        for t in range(8, 12): pre.append(self.piece_tr(t)); pre.append(self.piece_dma(t + 4))
        k = 0
        for i, x in enumerate(items):
            if i % 12 == 0 and k < len(pre):
                for y in pre[k]: self.run(y)
                k += 1
            self.run(x)
        for p in pre[k:]:
            for y in p: self.run(y)
        self.stamp(4)
        Q = [160, 164, 168, 172] + [192 + 4 * i for i in range(13)]
        def poll_kv():
            def so(r):
                e("s_lshl_b32 %s, s100, 7" % r)
                e("s_add_u32 %s, %s, %d" % (r, r, FKV))
            e("v_and_b32 v244, 15, v0")
            e("v_lshlrev_b32 v244, 3, v244")
            self.poll_issue("v244", so)
        kv1 = [self.poll_check,
               "s_lshl_b32 %s, s100, 14" % sWB, "s_add_u32 %s, %s, %d" % (sWB, sWB, KVP),
               "s_lshl_b32 %s, s100, 10" % sWH, "s_add_u32 %s, %s, %d" % (sWH, sWH, ZP),
               "v_and_b32 v244, 15, v0", "v_lshlrev_b32 v244, 6, v244", "v_and_b32 v245, 48, v0", "v_add_u32 v244, v244, v245",
               "buffer_load_dwordx4 %s, v244, %s, %s offen sc1" % (vr(Q[16]), SWS, sWH)]
        for r in range(16):
            if r and r % 4 == 0: kv1.append("s_add_u32 %s, %s, 4096" % (sWB, sWB))
            kv1.append("buffer_load_dwordx4 %s, %s, %s, %s offen offset:%d sc1" % (vr(Q[r]), vL16, SWS, sWB, (r & 3) * 1024))
        kv2 = []
        z = Q[16]
        for sh in (8, 4, 2, 1):
            for j in range(4): kv2.append("v_add_f32_dpp v%d, v%d, v%d row_ror:%d row_mask:0xf bank_mask:0xf" % (z + j, z + j, z + j, sh))
        kv2 += ["v_and_b32 v244, 15, v0", "v_bfe_u32 v245, v0, 4, 1", "v_lshl_add_u32 v244, v245, 5, v244", "v_lshlrev_b32 v244, 4, v244",
                "v_lshrrev_b32 v245, 5, v0", "v_lshl_add_u32 v244, v245, 3, v244",
                "s_lshl_b32 %s, %s, 10" % (st4, sWAVE), "s_add_u32 %s, %s, %d" % (st4, st4, KVF), "v_add_u32 v244, %s, v244" % st4,
                "v_cvt_pk_bf16_f32 v%d, v%d, v%d" % (z, z, z + 1), "v_cvt_pk_bf16_f32 v%d, v%d, v%d" % (z + 1, z + 2, z + 3),
                "ds_write_b64 v244, %s offset:256" % vr(z, 2)]
        stepw = 1
        while stepw < 16:
            for r in range(0, 16, 2 * stepw):
                for j in range(4): kv2.append("v_add_f32 v%d, v%d, v%d" % (Q[r] + j, Q[r] + j, Q[r + stepw] + j))
            stepw *= 2
        kv2 += ["v_cvt_pk_bf16_f32 v%d, v%d, v%d" % (Q[0], Q[0], Q[0] + 1), "v_cvt_pk_bf16_f32 v%d, v%d, v%d" % (Q[0] + 1, Q[0] + 2, Q[0] + 3),
                "ds_write_b64 v244, %s" % vr(Q[0], 2),
                "v_add_u32 v244, %d, %s" % (KVF, vL16),
                lambda: (e.wait(lg=e.lg_seq), e.barrier())]
        for hh in range(4): kv2.append("ds_read_b128 %s, v244 offset:%d" % (vr(160 + 4 * hh), hh * 1024))
        kv2 += ["s_lshl_b32 %s, %s, 2" % (st4, sIJ), "s_add_u32 %s, %s, 112" % (st4, st4), "s_lshl_b32 %s, %s, 10" % (st4, st4),
                "s_add_u32 %s, %s, %s" % (sWB, st4, sHST)]
        for hp in range(2):
            for k2 in range(2):
                hh = 2 * hp + k2
                kv2.append("v_mfma_f32_32x32x16_bf16 %s, %s, %s, 0" % (vr(192 + 16 * k2, 16), vr(160 + 4 * hh), vr(PQ + 4 * hh)))
            for k2 in range(2):
                hh = 2 * hp + k2
                a = 192 + 16 * k2
                kv2.append("v_add_f32 v%d, %s, v%d" % (a + 8, sEPS6, a + 8))
                kv2.append("v_rcp_f32 v%d, v%d" % (a + 8, a + 8))
                for j in range(8): kv2.append("v_mul_f32 v%d, v%d, v%d" % (a + j, a + j, a + 8))
                for j in range(4): kv2.append("v_cvt_pk_bf16_f32 v%d, v%d, v%d" % (224 + 4 * hh + j, a + 2 * j, a + 2 * j + 1))
                kv2.append("buffer_store_dwordx4 %s, %s, %s, %s offen offset:%d sc1" % (vr(224 + 4 * hh), vL16, SWS, sWB, hh * 1024))
        kv2.append(("mark", "ost", 0))
        flag_o = [("waitvm", "ost", 0),
                  "s_lshl_b32 %s, %s, 2" % (st4, sRB), "s_add_u32 %s, %s, %s" % (st4, st4, sWAVE),
                  "s_lshl_b32 %s, %s, 6" % (sWB, st4),
                  "s_lshl_b32 %s, %s, 3" % (st4, sIJ), "s_add_u32 %s, %s, %s" % (sWB, sWB, st4),
                  "s_add_u32 %s, %s, %d" % (sWB, sWB, FO), lambda: self.flag_store(sWB)]
        K1 = o.get("kvstep", 2)
        hooks = {"a_issued": 7, "rate": lambda n: 40}
        hooks[K1] = [poll_kv]
        hooks[K1 + 2] = kv1
        hooks[K1 + 5] = kv2
        hooks[K1 + 12] = flag_o
        hooks[K1 + 13] = self.ex_addr() + self.res_loads()
        hooks[29] = self.ex_write(ACCO, ["v2", "v3", "v4", "v5"]) + ["v_xor_b32 v8, 32, v30", "v_xor_b32 v9, 64, v30", "v_xor_b32 v14, 96, v30"]
        self.p2("A", 16, 12, hooks)
        self.stamp(5)
        self.final()
    def group_exec(self, items):
        out = []; i = 0
        while i < len(items):
            x = items[i]
            if isinstance(x, str) and x.startswith("s_mov_b64 exec, s["):
                j = i
                while not (isinstance(items[j], str) and items[j] == "s_mov_b64 exec, -1"): j += 1
                grp = items[i:j + 1]
                out.append(lambda grp=grp: [self.run(y) for y in grp])
                i = j + 1
            else:
                out.append(x); i += 1
        return out
    def drain_q(self):
        assert ("kvw", 0) in self.marks, "kv exchange writes not issued before the barrier"
    def build(self):
        e = self.e
        self.marks = {}
        self.prologue()
        snap = e.snapshot(); marks = dict(self.marks)
        self.path_A()
        for s in self.slow: e.raw(s)
        self.slow = []
        e.restore(snap); self.marks = dict(marks)
        self.path_B()
        for s in self.slow: e.raw(s)
        e.label("L_exit")
        e.raw("\ts_endpgm")
        e.label("L_end")
        head = open("cdna_kernels/%s.s.ref" % NAME).read().split("; Override launch")[0]
        out = head
        out += "; @launch grid=(256,1,1) block=(256,1,1) lds=%d\n" % LDS_BYTES
        out += '.amdgcn_target "amdgcn-amd-amdhsa--gfx950"\n.text\n.globl %s_kernel\n.p2align 8\n.type %s_kernel,@function\n%s_kernel:\n' % (NAME, NAME, NAME)
        out += e.text()
        out += '.section .rodata,"a"\n.p2align 6\n.amdhsa_kernel %s_kernel\n' % NAME
        out += "  .amdhsa_next_free_vgpr 512\n  .amdhsa_next_free_sgpr 102\n  .amdhsa_accum_offset 256\n  .amdhsa_group_segment_fixed_size 0\n"
        out += "  .amdhsa_kernarg_size 88\n  .amdhsa_user_sgpr_count 2\n  .amdhsa_user_sgpr_kernarg_segment_ptr 1\n  .amdhsa_system_sgpr_workgroup_id_x 1\n.end_amdhsa_kernel\n"
        return out

if __name__ == "__main__":
    opt = {}
    out = "cdna_kernels/%s.s" % NAME
    for a in sys.argv[1:]:
        k, v = a.split("=")
        if k == "out": out = v
        else:
            try: v = int(v)
            except ValueError: pass
            opt[k] = v
    g = Gen(opt)
    s = g.build()
    open(out, "w").write(s)
    print("written", out, len(s.splitlines()), "lines")
    print({k: v for k, v in sorted(g.e.count.items(), key=lambda x: -x[1])[:14]})
```

```python
import re

TRANS = ("v_exp_f32", "v_log_f32", "v_rcp_f32", "v_rsq_f32", "v_sqrt_f32", "v_sin_f32", "v_cos_f32")

def regs_of(tok):
    tok = tok.strip()
    if tok.startswith("-"): tok = tok[1:]
    m = re.match(r"^abs\((.*)\)$", tok)
    if m: tok = m.group(1)
    m = re.match(r"^([vas])(\d+)$", tok)
    if m: return [(m.group(1), int(m.group(2)))]
    m = re.match(r"^([vas])\[(\d+):(\d+)\]$", tok)
    if m: return [(m.group(1), i) for i in range(int(m.group(2)), int(m.group(3)) + 1)]
    if tok == "vcc": return [("s", 106), ("s", 107)]
    if tok == "vcc_lo": return [("s", 106)]
    if tok == "vcc_hi": return [("s", 107)]
    if tok == "exec": return [("s", 126), ("s", 127)]
    if tok == "exec_lo": return [("s", 126)]
    if tok == "exec_hi": return [("s", 127)]
    if tok == "m0": return [("s", 124)]
    return []

def split_ops(rest):
    parts = [p.strip() for p in rest.split(",")]
    ops = []
    mods = []
    for i, p in enumerate(parts):
        toks = p.split()
        if not toks: continue
        ops.append(toks[0])
        mods += toks[1:]
    return ops, mods

class Em:
    def __init__(self):
        self.lines = []
        self.clk = 0
        self.w = {}
        self.cread = {}
        self.sdata = {}
        self.vm_seq = 0; self.vm_done = 0
        self.lg_seq = 0; self.lg_done = 0
        self.pend = {}
        self.count = {}
        self.nbytes = 0
    def raw(self, text):
        self.lines.append(text)
    def comment(self, t):
        self.lines.append("; " + t)
    def label(self, name):
        self.lines.append(name + ":")
    def _out(self, text, states=1):
        self.lines.append("\t" + text)
        self.clk += states
        op = text.split()[0]
        self.count[op] = self.count.get(op, 0) + 1
    def nop(self, n):
        while n > 0:
            k = min(n, 16)
            self._out("s_nop %d" % (k - 1), k)
            n -= k
    def wait(self, vm=None, lg=None):
        parts = []
        if vm is not None and vm > self.vm_done:
            n = min(self.vm_seq - vm, 63)
            parts.append("vmcnt(%d)" % n)
            self.vm_done = max(self.vm_done, self.vm_seq - n)
            assert self.vm_done >= vm or self.vm_seq - vm > 63
            self.vm_done = max(self.vm_done, vm)
        if lg is not None and lg > self.lg_done:
            n = min(self.lg_seq - lg, 15)
            parts.append("lgkmcnt(%d)" % n)
            self.lg_done = max(self.lg_done, self.lg_seq - n, lg)
        if parts:
            self._out("s_waitcnt " + " ".join(parts))
    def wait_all(self):
        self.wait(vm=self.vm_seq, lg=self.lg_seq)
    def need(self, since, n):
        d = self.clk - since - 1
        return max(0, n - d)
    def __call__(self, text):
        text = text.strip()
        if "\n" in text:
            r = None
            for t in text.split("\n"):
                if t.strip(): r = self(t)
            return r
        sp = text.split(None, 1)
        op = sp[0]
        ops, mods = split_ops(sp[1]) if len(sp) > 1 else ([], [])
        R = []; W = []; kind = "salu"; A = B = C = D = None
        isdpp = any(m.startswith("row_") or m.startswith("quad_perm") for m in mods)
        if op.startswith("v_mfma"):
            kind = "mfma"
            D = regs_of(ops[0]); A = regs_of(ops[1]); B = regs_of(ops[2]); C = regs_of(ops[3])
            R = A + B + C; W = D
        elif op.startswith("ds_read"):
            kind = "ds"; W = regs_of(ops[0]); R = regs_of(ops[1])
        elif op.startswith("ds_"):
            kind = "ds"
            for o in ops: R += regs_of(o)
        elif op.startswith("buffer_load") or op.startswith("global_load"):
            kind = "vm"
            if "lds" in mods:
                for o in ops: R += regs_of(o)
                R += regs_of("m0")
            else:
                W = regs_of(ops[0])
                for o in ops[1:]: R += regs_of(o)
                if "d16" in op: R += W
        elif op.startswith("buffer_store") or op.startswith("global_store") or op.startswith("buffer_atomic"):
            kind = "vm"
            for o in ops: R += regs_of(o)
        elif op.startswith("v_"):
            kind = "valu"
            W = regs_of(ops[0])
            for o in ops[1:]: R += regs_of(o)
            if op.startswith("v_permlane"):
                W = W + regs_of(ops[1]); R = R + regs_of(ops[0])
            if op.startswith("v_dot2c") or op.startswith("v_fmac") or op.startswith("v_writelane"):
                R = R + W
            if op.startswith("v_cndmask") and len(ops) == 3:
                R += regs_of("vcc")
            if isdpp: R = R + W
        elif op in ("s_waitcnt",):
            raise Exception("use wait()")
        elif op in ("s_barrier", "s_nop", "s_sleep", "s_setprio", "s_endpgm", "s_branch") or op.startswith("s_cbranch"):
            kind = "ctl"
        elif op.startswith("s_cmp") or op.startswith("s_bitcmp"):
            for o in ops: R += regs_of(o)
        elif op.startswith("s_load") or op.startswith("s_memtime") or op.startswith("s_memrealtime"):
            kind = "smem"; W = regs_of(ops[0])
            for o in ops[1:]: R += regs_of(o)
        else:
            W = regs_of(ops[0])
            for o in ops[1:]: R += regs_of(o)
            if "saveexec" in op: W += regs_of("exec"); R += regs_of("exec")
        vmw = None; lgw = None
        for r in R + W:
            p = self.pend.get(r)
            if p:
                if p[0] == "vm": vmw = max(vmw or 0, p[1])
                else: lgw = max(lgw or 0, p[1])
        self.wait(vm=vmw, lg=lgw)
        for r in R + W:
            self.pend.pop(r, None)
        n = 0
        opbase = op.replace("_e32", "").replace("_e64", "").replace("_dpp", "")
        for r in set(R):
            lw = self.w.get(r)
            if not lw: continue
            k, c, info = lw
            if k == "mfma":
                big = len(info) == 16
                if kind == "mfma":
                    if r in A or r in B: n = max(n, self.need(c, 12 if big else 8))
                    if r in C:
                        if info != tuple(C): n = max(n, self.need(c, 10 if big else 6))
                else:
                    n = max(n, self.need(c, 12 if big else 8))
            elif k in ("valu", "trans", "dot"):
                if r[0] in "va":
                    if kind == "mfma": n = max(n, self.need(c, 2))
                    if op.startswith("v_permlane") or isdpp: n = max(n, self.need(c, 2))
                    if op.startswith("v_readfirstlane") or op.startswith("v_readlane"): n = max(n, self.need(c, 1))
                    if k == "trans" and kind == "valu" and opbase not in TRANS: n = max(n, self.need(c, 1))
                    if k == "trans" and kind != "valu": n = max(n, self.need(c, 1))
                    if k == "dot":
                        if not (opbase == info and r in W and r not in [x for o in ops[1:] for x in regs_of(o)]):
                            n = max(n, self.need(c, 3))
                else:
                    if kind == "valu": n = max(n, self.need(c, 2))
                    if kind == "vm": n = max(n, self.need(c, 5))
                    if kind == "salu": n = max(n, self.need(c, 1))
            elif k == "salu":
                if r == ("s", 124) and kind == "vm": n = max(n, self.need(c, 1))
        for r in set(W):
            lw = self.w.get(r)
            if lw:
                k, c, info = lw
                if k == "mfma" and kind != "mfma": n = max(n, self.need(c, 12 if len(info) == 16 else 8))
                if k == "mfma" and kind == "mfma" and info != tuple(D): n = max(n, self.need(c, 12 if len(info) == 16 else 8))
                if k == "dot" and not opbase == info: n = max(n, self.need(c, 3))
            if kind != "mfma" and r in self.cread: n = max(n, self.need(self.cread[r], 7))
            if r in self.sdata: n = max(n, self.need(self.sdata[r], 2))
        if n: self.nop(n)
        c = self.clk
        self._out(text)
        seq = None
        if kind == "vm":
            self.vm_seq += 1; seq = self.vm_seq
            for r in W: self.pend[r] = ("vm", seq)
            if op.startswith("buffer_store") or op.startswith("global_store"):
                d = regs_of(ops[0]) if op.startswith("buffer") else regs_of(ops[1])
                for r in d: self.sdata[r] = c
        elif kind == "ds":
            self.lg_seq += 1; seq = self.lg_seq
            for r in W: self.pend[r] = ("lg", seq)
            if op.startswith("ds_write"):
                for o in ops[1:]:
                    for r in regs_of(o): self.sdata[r] = c
        wk = kind
        info = None
        if kind == "valu":
            if opbase in TRANS: wk = "trans"
            elif opbase.startswith("v_dot"): wk = "dot"; info = opbase
        if kind == "mfma":
            info = tuple(D)
            for r in C: self.cread[r] = c
        for r in W:
            if kind in ("vm", "ds", "smem"): self.w.pop(r, None)
            else: self.w[r] = (wk, c, info)
        return seq
    def smem_wait(self):
        self._out("s_waitcnt lgkmcnt(0)")
        self.lg_done = self.lg_seq
    def barrier(self):
        self._out("s_barrier")
    def snapshot(self):
        import copy
        return copy.deepcopy((self.clk, self.w, self.cread, self.sdata, self.vm_seq, self.vm_done, self.lg_seq, self.lg_done, self.pend))
    def restore(self, s):
        import copy
        (self.clk, self.w, self.cread, self.sdata, self.vm_seq, self.vm_done, self.lg_seq, self.lg_done, self.pend) = copy.deepcopy(s)
    def text(self):
        return "\n".join(self.lines) + "\n"
```

```python
import sys
from em import Em

NAME = "recurrent_scan__linear_attn_block__dense_activation_squared_relu__prompt"

KVP = 0x900000
ZP = 0x980000
FKV = 0x990000
FO = 0x9A0000
RV = 0x9B0000
FH = 0x9C0000
WS_BYTES = 0x9F0000
STAMP = 0x1000000
XW = 65536
MM = 131072
CSX = [MM, MM + 4096, MM + 8192]
KVX = MM + 12288
RS = MM + 28672
ZX = MM + 29696
KVF = MM
LDS_BYTES = 163840
SX, SW, SW2, SWO, SWS, SOUT, SB1, SB2, SDBG = "s[4:7]", "s[8:11]", "s[12:15]", "s[16:19]", "s[20:23]", "s[24:27]", "s[28:31]", "s[32:35]", "s[36:39]"
sWAVE, sRB, sIJ, sROT, sRT, sCC, sSTRIDE = "s40", "s41", "s42", "s43", "s44", "s45", "s46"
sXB, sWA, sWB, sWH, sS64, sM0X, sM0WA, sM0WB, sM0WH = "s47", "s48", "s49", "s50", "s51", "s52", "s53", "s54", "s55"
st0, st1, st2, st3 = "s56", "s57", "s58", "s59"
sNONCE = "s[60:61]"
sHST = "s62"; sTYPE = "s63"
sMASK = "s[64:65]"; sONES = "s66"; sAB = "s67"; sBB = "s68"; sSPIN = "s69"
sW2B = "s70"; sWOB = "s71"; sAW = "s72"; sAO = "s73"; sR = "s74"; sHEAD = "s75"
sHA0, sHA1, sHB1, sHB2 = "s76", "s77", "s78", "s79"
sq0, sq1, sq2, sq3 = "s80", "s81", "s82", "s83"
sM1 = "s[84:85]"; sLO = "s[86:87]"
sEPS6 = "s88"; sLOG2E = "s89"; sFL = "s90"; sFL2 = "s91"; sT0 = "s92"; st4 = "s93"; sTM = "s[94:95]"
sPC = "s[96:97]"; sOUT0 = "s98"; sOUT1 = "s99"
vL16 = "v1"
def vOX(q): return "v%d" % (2 + q)
def vOW(q): return "v%d" % (6 + q)
def vOB(q): return "v%d" % (10 + q)
vOH = "v14"
def vTW(s, cb): return "v%d" % (15 + 2 * s + cb)
def vXR(s): return "v%d" % (23 + s)
def vTH(s): return "v%d" % (27 + s)
vST = "v31"
ACCA, ACCB, BFR = 32, 96, 144
SEL = 176; CSBACC = 180
vSR = ["v200", "v201"]; SF = 204; SUMA = 212; GRAM = 216; CSAACC = 224
VQ = 224; vRI = "v228"; vA0 = "v229"; vA1 = "v230"; vA2t = "v231"; CS = 232; UQ0 = 236; B1V = 240; vT = "v247"
vTB = ["v248", "v249"]; vA2 = "v250"; vPO = "v251"; vPD = 252; vNO = 254
AR = 32; ACCO = 160; ACCS = 96
PQ = 128
KORD = list(range(0, 8)) + list(range(16, 24)) + [8, 9, 10, 11, 24, 25, 26, 27] + [12, 13, 14, 15]

def vr(a, n=4): return "v[%d:%d]" % (a, a + n - 1)
def ar(a, n=4): return "a[%d:%d]" % (a, a + n - 1)
MF = "v_mfma_f32_32x32x16_bf16"
MS = "v_mfma_f32_16x16x32_bf16"

def spread(n, k):
    return [(n * (i + 1)) // k - (n * i) // k for i in range(k)]

class Gen:
    def __init__(self, opt):
        self.o = opt
        self.e = Em()
        self.slow = []
        self.nlab = 0
        self.pend_stamp = None
        self.marks = {}
    def run(self, item):
        e = self.e
        if isinstance(item, str):
            if self.o.get("nores") and item.startswith("buffer_load") and ("v15," in item or "v[24:27]" in item or "v246" in item or "v247, v8" in item): return
            if self.o.get("nodatast") and item.startswith("buffer_store_dwordx4") and "sc1" in item: return
            if self.o.get("nostore") and item.startswith("buffer_store") and "sc1" in item: return
            e(item)
        elif isinstance(item, list):
            for x in item: self.run(x)
        elif callable(item): item()
        elif item[0] == "mark":
            self.marks[(item[1], item[2])] = (e.vm_seq, e.lg_seq)
        elif item[0] == "waitvm":
            if self.o.get("noflag") and item[1] in ("hst", "kvst", "ost"): return
            e.wait(vm=self.marks[(item[1], item[2])][0])
        elif item[0] == "waitlg":
            e.wait(lg=self.marks[(item[1], item[2])][1])
        elif item[0] == "need":
            assert (item[1], item[2]) in self.marks, item
    def stamp(self, idx, last=False):
        if not self.o.get("stamps"): return
        e = self.e
        if self.pend_stamp is not None:
            e("v_writelane_b32 %s, s94, %d" % (vST, self.pend_stamp))
        e.raw("\ts_memtime %s" % sTM)
        self.pend_stamp = idx
        if last:
            e.smem_wait()
            e("v_writelane_b32 %s, s94, %d" % (vST, idx))
            e.raw("\ts_memrealtime %s" % sTM)
            e.smem_wait()
            e("v_writelane_b32 %s, s94, 63" % vST)
            e("v_writelane_b32 %s, %s, 62" % (vST, sT0))
            e("s_lshl_b32 s94, s2, 10")
            e("s_lshl_b32 s95, %s, 8" % sWAVE)
            e("s_add_u32 s94, s94, s95")
            e("s_add_u32 s94, s94, %d" % STAMP)
            e("v_lshlrev_b32 v0, 2, v0")
            e("buffer_store_dword %s, v0, %s, s94 offen" % (vST, SWS))
    def poll_issue(self, voff, so):
        def f():
            for x in so: self.e(x)
            self.e("buffer_load_dwordx2 v[%d:%d], %s, %s, %s offen sc1" % (vPD, vPD + 1, voff, SWS, sFL))
            self.poll_voff = voff
        f.vm = True
        return f
    def poll_check(self):
        e = self.e
        if self.o.get("nopoll"): return
        self.nlab += 1
        n = self.nlab
        e("v_cmp_eq_u64 vcc, %s, v[%d:%d]" % (sNONCE, vPD, vPD + 1))
        e("s_cmp_eq_u64 vcc, exec")
        e("s_cbranch_scc0 L_slow%d" % n)
        e.label("L_back%d" % n)
        self.slow += ["L_slow%d:" % n, "\ts_mov_b32 %s, 0" % sSPIN, "L_spin%d:" % n,
                      "\tbuffer_load_dwordx2 v[%d:%d], %s, %s, %s offen sc1" % (vPD, vPD + 1, self.poll_voff, SWS, sFL),
                      "\ts_waitcnt vmcnt(0)",
                      "\tv_cmp_eq_u64 vcc, %s, v[%d:%d]" % (sNONCE, vPD, vPD + 1),
                      "\ts_add_u32 %s, %s, 1" % (sSPIN, sSPIN),
                      "\ts_cmp_eq_u64 vcc, exec",
                      "\ts_cbranch_scc1 L_back%d" % n,
                      "\ts_cmp_lt_u32 %s, 0x8000" % sSPIN,
                      "\ts_cbranch_scc1 L_spin%d" % n,
                      "\ts_branch L_back%d" % n]
    def flag_store(self, so):
        if self.o.get("noflag"): return []
        return [so + ["s_mov_b64 exec, 1",
                      "buffer_store_dwordx2 v[%d:%d], off, %s, s3 sc1" % (vNO, vNO + 1, SWS),
                      "s_mov_b64 exec, -1"]]
    def get_nonce(self):
        e = self.e
        def issue():
            e("buffer_load_dwordx2 v[%d:%d], off, %s, 0 sc1" % (vNO, vNO + 1, SDBG))
        def check():
            self.nlab += 1; n = self.nlab
            e("v_readfirstlane_b32 s61, v%d" % (vNO + 1))
            e("v_readfirstlane_b32 s60, v%d" % vNO)
            e("s_cmp_eq_u32 s61, 0")
            e("s_cbranch_scc1 L_slow%d" % n)
            e.label("L_back%d" % n)
            self.slow += ["L_slow%d:" % n, "\ts_mov_b32 %s, 0" % sSPIN, "L_spin%d:" % n, "\ts_sleep 1",
                          "\tbuffer_load_dwordx2 v[%d:%d], off, %s, 0 sc1" % (vNO, vNO + 1, SDBG),
                          "\ts_waitcnt vmcnt(0)",
                          "\tv_readfirstlane_b32 s61, v%d" % (vNO + 1), "\tv_readfirstlane_b32 s60, v%d" % vNO,
                          "\ts_add_u32 %s, %s, 1" % (sSPIN, sSPIN), "\ts_nop 4",
                          "\ts_cmp_lg_u32 s61, 0", "\ts_cbranch_scc1 L_back%d" % n,
                          "\ts_cmp_lt_u32 %s, 0x8000" % sSPIN, "\ts_cbranch_scc1 L_spin%d" % n,
                          "\ts_branch L_back%d" % n]
        issue.vm = True
        return issue, check
    def prologue(self):
        e = self.e; o = self.o
        e("s_cmp_ge_u32 s2, 256")
        e("s_cbranch_scc1 L_exit")
        if o.get("stamps"):
            e.raw("\ts_memrealtime s[98:99]")
            e.raw("\ts_memtime %s" % sTM)
            self.pend_stamp = 0
        e("s_load_dwordx16 s[64:79], s[0:1], 0")
        e("s_load_dwordx4 s[80:83], s[0:1], 64")
        e("s_load_dwordx2 s[84:85], s[0:1], 80")
        e.raw("\ts_getpc_b64 %s" % sPC)
        e.label("L_pc")
        e("s_lshr_b32 %s, s2, 3" % st3)
        e("s_and_b32 %s, %s, 3" % (st0, st3))
        e("s_lshl_b32 %s, %s, 15" % (st0, st0))
        e("v_lshlrev_b32 v2, 7, v0")
        e("v_add_u32 v2, %s, v2" % st0)
        e("v_lshrrev_b32 v3, 6, v0")
        e("v_min_u32 v2, L_end-L_pc-4, v2")
        e("v_readfirstlane_b32 %s, v3" % sWAVE)
        if not o.get("notouch"):
            e("global_load_dword v195, v2, %s" % sPC)
        e("v_and_b32 v0, 63, v0")
        e("s_and_b32 %s, s2, 7" % st2)
        e("s_lshr_b32 %s, %s, 2" % (sRB, st2))
        e("s_lshl_b32 %s, %s, 3" % (sRB, sRB))
        e("s_and_b32 %s, %s, 7" % (st0, st3))
        e("s_add_u32 %s, %s, %s" % (sRB, sRB, st0))
        e("s_lshr_b32 %s, %s, 3" % (st1, st3))
        e("s_lshr_b32 %s, %s, 1" % (sTYPE, st1))
        e("s_and_b32 %s, %s, 3" % (sIJ, st2))
        e("s_lshl_b32 %s, %s, 1" % (sIJ, sIJ))
        e("s_and_b32 %s, %s, 1" % (sROT, st1))
        e("s_add_u32 %s, %s, %s" % (sIJ, sIJ, sROT))
        rmode = o.get("rot", 8)
        if rmode == 8:
            e("s_lshl_b32 %s, %s, 1" % (sROT, st1))
            e("s_add_u32 %s, %s, %s" % (sROT, sROT, st0))
            e("s_and_b32 %s, %s, 7" % (sROT, sROT))
        elif rmode == 0:
            e("s_mov_b32 %s, 0" % sROT)
        elif rmode == 1:
            e("s_lshl_b32 %s, %s, 1" % (sROT, st2))
            e("s_lshr_b32 %s, %s, 2" % (st0, st2))
            e("s_add_u32 %s, %s, %s" % (sROT, sROT, st0))
            e("s_and_b32 %s, %s, 7" % (sROT, sROT))
        elif rmode == 2:
            e("s_add_u32 %s, %s, %s" % (sROT, st0, st1))
            e("s_and_b32 %s, %s, 1" % (sROT, sROT))
            e("s_lshl_b32 %s, %s, 2" % (sROT, sROT))
            e("s_add_u32 %s, %s, %s" % (sROT, sROT, st2))
            e("s_and_b32 %s, %s, 7" % (sROT, sROT))
        elif rmode == 4:
            e("s_add_u32 %s, %s, %s" % (sROT, st0, st1))
            e("s_and_b32 %s, %s, 3" % (sROT, sROT))
            e("s_lshl_b32 %s, %s, 1" % (sROT, sROT))
            e("s_and_b32 %s, %s, 1" % (st0, st2))
            e("s_add_u32 %s, %s, %s" % (sROT, sROT, st0))
        e("s_movk_i32 %s, 3072" % sSTRIDE)
        e("s_cmp_eq_u32 %s, 0" % sTYPE)
        e("s_cselect_b32 %s, %s, 3584" % (sSTRIDE, sSTRIDE))
        e("v_lshrrev_b32 v32, 3, v0")
        e("v_and_b32 v33, 7, v0")
        e("v_lshrrev_b32 v34, 4, v0")
        e("v_xor_b32 v35, v33, v34")
        e("v_lshlrev_b32 v35, 4, v35")
        e("v_lshl_add_u32 %s, v32, 10, v35" % vOX(0))
        e("v_xor_b32 v36, 64, %s" % vOX(0))
        e("v_add_u32 %s, 7168, v36" % vOX(1))
        e("v_add_u32 %s, 14336, %s" % (vOX(2), vOX(0)))
        e("v_add_u32 %s, 21504, v36" % vOX(3))
        e("v_and_b32 v35, 16, v0")
        e("v_lshrrev_b32 v35, 2, v35")
        e("v_xor_b32 v35, v33, v35")
        e("v_lshlrev_b32 v35, 4, v35")
        e("v_mul_lo_u32 v36, v32, %s" % sSTRIDE)
        e("v_add_u32 %s, v36, v35" % vOW(0))
        e("s_lshl_b32 %s, %s, 3" % (st0, sSTRIDE))
        e("s_sub_u32 %s, %s, 1024" % (st0, st0))
        for q in range(1, 4):
            e("v_add_u32 %s, %s, %s" % (vOW(q), st0, vOW(q - 1)))
        e("s_lshl_b32 %s, %s, 2" % (sHST, sRB))
        e("s_add_u32 %s, %s, %s" % (sHST, sHST, sWAVE))
        e("s_lshl_b32 %s, %s, 15" % (sXB, sHST))
        e("s_lshl_b32 %s, %s, 6" % (sS64, sSTRIDE))
        e("s_lshl_b32 %s, %s, 14" % (sM0X, sWAVE))
        e("s_add_u32 %s, %s, %d" % (sM0X, sM0X, XW))
        e("s_lshl_b32 %s, %s, 12" % (sM0WA, sWAVE))
        e("s_lshr_b32 %s, %s, 1" % (st0, sWAVE))
        e("s_lshr_b32 %s, %s, 1" % (st1, sIJ))
        e("s_mul_i32 %s, %s, 7" % (sWH, st1))
        e("s_and_b32 %s, %s, 1" % (sWB, sIJ))
        e("s_lshl2_add_u32 %s, %s, %s" % (st1, sWB, sWH))
        e("s_lshl_b32 %s, %s, 7" % (st4, st1))
        e("s_lshl_b32 %s, %s, 7" % (st2, st0))
        e("s_add_u32 %s, %s, %s" % (sWA, st4, st2))
        e("s_lshl_b32 %s, %s, 7" % (sFL, sIJ))
        e("s_lshl_b32 %s, %s, 10" % (st2, st0))
        e("s_add_u32 %s, %s, %s" % (st2, st2, sFL))
        e("s_add_u32 %s, %s, 1024" % (st2, st2))
        e("s_cmp_eq_u32 %s, 0" % sTYPE)
        e("s_cselect_b32 %s, %s, %s" % (sWA, st2, sWA))
        e("s_and_b32 %s, %s, 1" % (st0, sWAVE))
        e("s_lshl_b32 %s, %s, 5" % (st0, st0))
        e("s_mul_i32 %s, %s, %s" % (st0, st0, sSTRIDE))
        e("s_add_u32 %s, %s, %s" % (sWA, sWA, st0))
        e.smem_wait()
        if o.get("stamps"):
            e("s_mov_b32 %s, s98" % sT0)
        def srd(base, lo, hi, nbytes):
            e("s_mov_b32 s%d, s%d" % (base, lo))
            e("s_and_b32 s%d, s%d, 0xffff" % (base + 1, hi))
            e("s_mov_b32 s%d, %d" % (base + 2, nbytes))
            e("s_mov_b32 s%d, 0x20000" % (base + 3))
        srd(4, 64, 65, 2097152)
        e("s_cmp_eq_u32 %s, 0" % sTYPE)
        e("s_cselect_b32 s8, s66, s72")
        e("s_cselect_b32 s9, s67, s73")
        e("s_mov_b32 s10, 1572864")
        e("s_cselect_b32 s10, s10, 1835008")
        e("s_and_b32 s9, s9, 0xffff")
        e("s_mov_b32 s11, 0x20000")
        self.vm_now(self.dma_a(0, 0))
        self.stamp(1)
        srd(36, 82, 83, 256)
        e("s_or_b32 %s, s2, %s" % (st0, sWAVE))
        e("s_cmp_lg_u32 %s, 0" % st0)
        e("s_cbranch_scc1 L_nonce_done")
        e.raw("\ts_memrealtime %s" % sNONCE)
        e.smem_wait()
        e("s_or_b32 s61, s61, 0x80000000")
        e("v_mov_b32 v%d, s60" % vNO)
        e("v_mov_b32 v%d, s61" % (vNO + 1))
        e("s_mov_b64 exec, 1")
        e.raw("\tbuffer_store_dwordx2 v[%d:%d], off, %s, 0 sc1" % (vNO, vNO + 1, SDBG))
        e("s_mov_b64 exec, -1")
        e.label("L_nonce_done")
        self.vm_now(self.dma_a(1, 0))
        srd(20, 84, 85, WS_BYTES if not o.get("stamps") else STAMP + 256 * 1024)
        srd(12, 76, 77, 1835008)
        srd(16, 68, 69, 524288)
        srd(24, 80, 81, 2097152)
        srd(28, 74, 75, 3584)
        srd(32, 78, 79, 1024)
        e("s_mov_b32 %s, %s" % (sR, sHST))
        e("s_mul_i32 %s, %s, %d" % (sHST, sHST, 144 * 1024))
        e("s_lshl_b32 %s, %s, 11" % (sM0WB, sWAVE))
        e("s_lshl_b32 %s, %s, 10" % (sM0WH, sWAVE))
        e("s_lshl_b32 %s, %s, 2" % (st0, sWH))
        e("s_lshl1_add_u32 %s, %s, %s" % (st1, sWB, st0))
        e("s_add_u32 %s, %s, 12" % (st1, st1))
        e("s_lshl_b32 %s, %s, 10" % (st1, st1))
        e("s_add_u32 %s, %s, %s" % (sHB2, st1, sHST))
        e("s_lshl4_add_u32 %s, %s, %s" % (st1, sWB, st0))
        e("s_lshl_b32 %s, %s, 10" % (st1, st1))
        e("s_add_u32 %s, %s, %s" % (sHA0, st1, sHST))
        e("s_add_u32 %s, %s, 4096" % (sHA1, sHA0))
        e("s_add_u32 %s, %s, 8192" % (sHB1, sHA0))
        e("s_add_u32 %s, %s, 3" % (sWH, sWH))
        e("s_lshl_b32 %s, %s, 7" % (sWH, sWH))
        e("s_lshl_b32 %s, %s, 6" % (sWB, sWB))
        e("s_add_u32 %s, %s, %s" % (sFL2, sWH, sWB))
        e("s_add_u32 %s, %s, 256" % (sWB, st4))
        e("s_cmp_eq_u32 %s, 0" % sTYPE)
        e("s_cselect_b32 %s, %s, %s" % (sWB, sFL, sWB))
        e("s_lshl_b32 %s, %s, 4" % (st0, sWAVE))
        e("s_mul_i32 %s, %s, %s" % (st0, st0, sSTRIDE))
        e("s_add_u32 %s, %s, %s" % (sWB, sWB, st0))
        e("s_add_u32 %s, %s, %s" % (sWH, sFL2, st0))
        e("s_lshl2_add_u32 %s, %s, %s" % (sHEAD, sIJ, sWAVE))
        e("s_and_b32 %s, s2, 7" % st2)
        e("s_lshr_b32 %s, s2, 3" % st3)
        if o.get("p2", "4x8") == "4x8":
            e("s_and_b32 %s, %s, 3" % (st0, st3))
            e("s_lshl2_add_u32 %s, %s, %s" % (sRT, st2, st0))
            e("s_lshr_b32 %s, %s, 2" % (sCC, st3))
        else:
            e("s_lshr_b32 %s, %s, 1" % (sRT, st2))
            e("s_and_b32 %s, %s, 7" % (st0, st3))
            e("s_lshl3_add_u32 %s, %s, %s" % (sRT, sRT, st0))
            e("s_and_b32 %s, %s, 1" % (sCC, st2))
            e("s_lshr_b32 %s, %s, 3" % (st0, st3))
            e("s_lshl2_add_u32 %s, %s, %s" % (sCC, sCC, st0))
        e("s_lshl_b32 %s, %s, 7" % (sBB, sCC))
        e("s_mul_i32 %s, %s, %d" % (sW2B, sWAVE, 448 * 1024))
        e("s_add_u32 %s, %s, %s" % (sW2B, sW2B, sBB))
        e("s_lshl_b32 %s, %s, 17" % (sWOB, sWAVE))
        e("s_add_u32 %s, %s, %s" % (sWOB, sWOB, sBB))
        e("s_mul_i32 %s, %s, %d" % (sAB, sRT, 288 * 1024))
        e("s_mul_i32 %s, %s, %d" % (sAW, sWAVE, 28 * 1024))
        e("s_add_u32 %s, %s, %s" % (sAW, sAW, sAB))
        e("s_lshl_b32 %s, %s, 13" % (sAO, sWAVE))
        e("s_add_u32 %s, %s, %s" % (sAO, sAO, sAB))
        e("s_add_u32 %s, %s, %d" % (sAO, sAO, 112 * 1024))
        e("v_lshlrev_b32 %s, 4, v0" % vL16)
        e("v_lshl_add_u32 %s, v32, 10, v35" % vOB(0))
        for q in range(1, 4):
            e("v_add_u32 %s, 7168, %s" % (vOB(q), vOB(q - 1)))
        e("v_and_b32 v32, 3, v0")
        e("v_bfe_u32 v33, v0, 2, 2")
        e("v_bfe_u32 v34, v0, 4, 1")
        e("v_lshrrev_b32 v35, 5, v0")
        e("v_lshl_add_u32 v36, v35, 3, v33")
        e("v_and_b32 v37, 2, v33")
        e("v_xor_b32 v37, v37, v34")
        e("v_lshlrev_b32 v37, 5, v37")
        e("v_lshl_add_u32 v37, v32, 3, v37")
        e("v_lshl_add_u32 v38, v36, 7, v37")
        e("v_lshlrev_b32 v39, 5, v34")
        e("v_lshl_add_u32 v39, v32, 3, v39")
        e("v_lshl_add_u32 v39, v36, 6, v39")
        e("v_and_b32 v40, 31, v0")
        e("v_bfe_u32 v41, v0, 1, 3")
        e("v_xor_b32 v42, v41, v35")
        e("v_lshlrev_b32 v42, 4, v42")
        e("v_lshl_add_u32 v42, v40, 7, v42")
        e("v_add_u32 v42, %s, v42" % sM0X)
        for s in range(4):
            e("s_add_u32 %s, %s, %d" % (st0, sWAVE, s))
            e("s_and_b32 %s, %s, 3" % (st0, st0))
            e("s_lshl_b32 %s, %s, 11" % (st1, st0))
            e("v_add_u32 %s, %s, v38" % (vTW(s, 0), st1))
            e("v_xor_b32 %s, 64, %s" % (vTW(s, 1), vTW(s, 0)))
            e("s_lshl_b32 %s, %s, 10" % (st1, st0))
            e("v_add_u32 %s, %s, v39" % (vTH(s), st1))
            e("s_lshl_b32 %s, %s, 5" % (st1, st0))
            e("v_xor_b32 %s, %s, v42" % (vXR(s), st1))
        e("v_lshrrev_b32 v43, 4, v0")
        e("v_xor_b32 v43, v43, v41")
        e("v_lshlrev_b32 v43, 4, v43")
        e("v_and_b32 v44, 15, v0")
        e("v_lshl_add_u32 v43, v44, 7, v43")
        e("v_add_u32 %s, %s, v43" % (vSR[0], sM0X))
        e("v_xor_b32 %s, 64, %s" % (vSR[1], vSR[0]))
        e("v_bfe_u32 v43, v0, 2, 1")
        e("v_cmp_eq_u32 vcc, v43, v34")
        e("v_mov_b32 v44, 0x3f803f80")
        for j in range(4): e("v_cndmask_b32 v%d, 0, v44, vcc" % (SEL + j))
        e("v_lshl_add_u32 v36, v35, 2, v33")
        e("v_lshl_add_u32 v36, v36, 7, v37")
        e("v_add_u32 %s, %s, v36" % (vTB[0], sM0X))
        e("v_xor_b32 %s, 64, %s" % (vTB[1], vTB[0]))
        e("v_add_u32 %s, %d, %s" % (vA2, 144 * 1024, vL16))
        e("v_lshrrev_b32 v36, 2, v0")
        e("v_mul_u32_u24 v36, 3584, v36")
        e("v_lshl_add_u32 %s, v32, 4, v36" % vOH)
        e("v_and_b32 v36, 2, v0")
        e("v_lshlrev_b32 v36, 9, v36")
        e("v_and_b32 v37, 1, v0")
        e("v_lshl_add_u32 %s, v37, 7, v36" % vPO)
        e("s_mov_b32 s64, 0xffff0000")
        e("s_mov_b32 s65, 0xffff0000")
        e("s_mov_b32 %s, 0x3f803f80" % sONES)
        e("s_mov_b32 %s, 0x358637bd" % sEPS6)
        e("s_mov_b32 %s, 0x3fb8aa3b" % sLOG2E)
        e("s_mov_b32 s86, -1")
        e("s_mov_b32 s87, 0")
        e("s_cmp_eq_u32 %s, 0" % sTYPE)
        e("s_cbranch_scc0 L_typeB")
    def dma_a(self, c, at):
        slot = c & 3
        pre = ["s_add_u32 %s, %s, %d" % (st0, sROT, c), "s_and_b32 %s, %s, 7" % (st0, st0),
               "s_mul_i32 %s, %s, %s" % (st1, st0, sS64), "s_lshl_b32 %s, %s, 7" % (st0, st0),
               "s_add_u32 m0, %s, %d" % (sM0X, slot * 4096),
               "s_add_u32 %s, %s, %s" % (st2, st0, sXB), "s_add_u32 %s, %s, %s" % (st3, st1, sWA)]
        out = []
        for q in range(4):
            out.append((at, pre if q == 0 else [], "buffer_load_dwordx4 %s, %s, %s offen offset:%d lds" % (vOX(q), SX, st2, q * 1024), []))
        for q in range(4):
            out.append((at, ["s_add_u32 m0, %s, %d" % (sM0WA, slot * 16384)] if q == 0 else [],
                        "buffer_load_dwordx4 %s, %s, %s offen offset:%d lds" % (vOW(q), SW, st3, q * 1024),
                        [("mark", "chunk", c)] if q == 3 else []))
        return out
    def dma_b1(self, c, at):
        pre = ["s_add_u32 %s, %s, %d" % (st0, sROT, c & 7), "s_and_b32 %s, %s, 7" % (st0, st0),
               "s_mul_i32 %s, %s, %s" % (st1, st0, sS64), "s_add_u32 m0, %s, %d" % (sM0WB, (c - 8) * 8192),
               "s_add_u32 %s, %s, %s" % (st1, st1, sWB)]
        return [(at, pre, "buffer_load_dwordx4 %s, %s, %s offen lds" % (vOW(0), SW, st1), []),
                (at, [], "buffer_load_dwordx4 %s, %s, %s offen offset:1024 lds" % (vOW(1), SW, st1), [("mark", "chunk", c)])]
    def dma_b2(self, j, at):
        pre = ["s_add_u32 %s, %s, %d" % (st0, sROT, j), "s_and_b32 %s, %s, 7" % (st0, st0),
               "s_mul_i32 %s, %s, %s" % (st1, st0, sS64), "s_add_u32 m0, %s, %d" % (sM0WH, j * 4096),
               "s_add_u32 %s, %s, %s" % (st1, st1, sWH)]
        return [(at, pre, "buffer_load_dwordx4 %s, %s, %s offen lds" % (vOH, SW, st1), [("mark", "chunk", 16 + j)])]
    def piece_dma(self, t, at):
        if t < 14: base, off, srd = sW2B, KORD[2 * t] * 16384, SW2
        else: base, off, srd = sWOB, (t - 14) * 32768, SWO
        pre = ([("waitlg", "ptr", t - 4)] if t >= 4 else []) + ["s_add_u32 m0, %s, %d" % (sM0X, (t & 3) * 4096), "s_add_u32 %s, %s, %d" % (st2, base, off)]
        return [(at, pre if q == 0 else [], "buffer_load_dwordx4 %s, %s, %s offen offset:%d lds" % (vOB(q), srd, st2, q * 1024),
                 [("mark", "pdma", t)] if q == 3 else []) for q in range(4)]
    def vm_now(self, entries):
        for at, pre, ins, post in entries:
            self.run(pre); self.run(ins); self.run(post)
    def touch(self, at):
        mode = self.o.get("wtouch", 1)
        if not mode: return []
        out = []
        if mode == 1:
            pre = ["s_lshl2_add_u32 %s, s2, %s" % (st0, sWAVE), "s_mul_i32 %s, %s, %d" % (st1, st0, 14 * 128), "s_lshl_b32 %s, %s, 9" % (st0, st0),
                   "v_lshlrev_b32 v198, 7, v0", "v_min_u32 v199, %d, v198" % (13 * 128), "v_min_u32 v198, %d, v198" % (3 * 128)]
            out.append((at, pre, "buffer_load_dword v199, v199, %s, %s offen" % (SW2, st1), []))
            out.append((at, [], "buffer_load_dword v198, v198, %s, %s offen" % (SWO, st0), []))
        else:
            pre = ["s_lshr_b32 %s, s2, 3" % st0, "s_lshl2_add_u32 %s, %s, %s" % (st0, st0, sWAVE), "s_mul_i32 %s, %s, %d" % (st1, st0, 112 * 128), "s_lshl_b32 %s, %s, 12" % (st0, st0),
                   "v_lshlrev_b32 v198, 7, v0", "v_min_u32 v199, %d, v198" % (47 * 128), "v_min_u32 v197, %d, v198" % (31 * 128)]
            out.append((at, pre, "buffer_load_dword v196, v198, %s, %s offen" % (SW2, st1), []))
            out.append((at + 1, ["s_add_u32 %s, %s, 8192" % (st1, st1)], "buffer_load_dword v199, v199, %s, %s offen" % (SW2, st1), []))
            out.append((at + 2, [], "buffer_load_dword v197, v197, %s, %s offen" % (SWO, st0), []))
        return out
    def pslot(self, t):
        k = t & 15
        return 128 + 16 * k if k < 8 else 16 * (k - 8)
    def piece_tr(self, t):
        it = [("waitvm", "pdma", t)]
        b = self.pslot(t)
        for u in range(2):
            for cb in range(2):
                for tt in range(2):
                    it.append("ds_read_b64_tr_b16 %s, %s offset:%d" % (ar(b + 8 * u + 4 * cb + 2 * tt, 2), vTB[cb], (t & 3) * 4096 + u * 2048 + tt * 1024))
        it.append(("mark", "ptr", t))
        return it
    def g_reads(self, n):
        buf = BFR + 16 * (n & 1)
        it = []
        if n < 32:
            c, s = n >> 2, n & 3
            slot = c & 3
            it.append("ds_read_b128 %s, %s offset:%d" % (ar(4 * n), vXR(s), slot * 4096))
            for i in range(4):
                for t in range(2):
                    it.append("ds_read_b64_tr_b16 %s, %s offset:%d" % (vr(buf + 4 * i + 2 * t, 2), vTW(s, i & 1), slot * 16384 + (i >> 1) * 8192 + t * 512))
            it.append("ds_read_b128 %s, %s offset:%d" % (vr(SF + 4 * (n & 1)), vSR[s >> 1], slot * 4096 + (s & 1) * 2048))
        elif n < 64:
            c, s = n >> 2, n & 3
            for i in range(2):
                for t in range(2):
                    it.append("ds_read_b64_tr_b16 %s, %s offset:%d" % (vr(buf + 4 * i + 2 * t, 2), vTW(s, i), (c - 8) * 8192 + t * 512))
        else:
            for i in range(2):
                k = 2 * (n - 64) + i
                for t in range(2):
                    it.append("ds_read_b64_tr_b16 %s, %s offset:%d" % (vr(buf + 4 * i + 2 * t, 2), vTH(k & 3), (k >> 2) * 4096 + t * 256))
        it.append(("mark", "frag", n))
        return it
    def g_mfmas(self, n, typ):
        buf = BFR + 16 * (n & 1)
        out = []
        if n < 32:
            for i in range(4):
                d = vr(ACCA + 16 * i, 16); w = vr(buf + 4 * i); x = ar(4 * n)
                a, b = (x, w) if typ == "A" else (w, x)
                out.append("%s %s, %s, %s, %s" % (MF, d, a, b, "0" if n == 0 else d))
        elif n < 64:
            for i in range(2):
                d = vr(ACCB + 16 * i, 16)
                out.append("%s %s, %s, %s, %s" % (MF, d, vr(buf + 4 * i), ar(4 * (n - 32)), "0" if n == 32 else d))
        else:
            for i in range(2):
                k = 2 * (n - 64) + i
                d = vr(ACCB + 32, 16)
                out.append("%s %s, %s, %s, %s" % (MF, d, vr(buf + 4 * i), ar(4 * k), "0" if k == 0 else d))
        return out
    def g_small(self, n):
        it = []
        buf = BFR + 16 * (n & 1)
        if n < 32:
            it.append("%s %s, %s, %s, %s" % (MS, vr(SUMA), vr(SEL), ar(4 * n), "0" if n == 0 else vr(SUMA)))
            g = GRAM + 4 * (n & 1); f = vr(SF + 4 * (n & 1))
            it.append("%s %s, %s, %s, %s" % (MS, vr(g), f, f, "0" if n < 2 else vr(g)))
            if (n & 3) == 0:
                for i in range(4):
                    it.append("%s %s, %s, %s, %s" % (MS, vr(CSAACC + 4 * i), vr(SEL), vr(buf + 4 * i), "0" if n == 0 else vr(CSAACC + 4 * i)))
        elif n < 64:
            if (n & 3) == 0:
                for i in range(2):
                    it.append("%s %s, %s, %s, %s" % (MS, vr(CSBACC + 4 * i), vr(SEL), vr(buf + 4 * i), "0" if n == 32 else vr(CSBACC + 4 * i)))
        elif (n & 1) == 0:
            it.append("%s %s, %s, %s, %s" % (MS, vr(CSBACC + 8), vr(SEL), vr(buf), "0" if n == 64 else vr(CSBACC + 8)))
        return it
    def has_vm(self, items):
        for x in items:
            if isinstance(x, str) and x.startswith("buffer_"): return True
            if isinstance(x, list) and self.has_vm(x): return True
            if callable(x) and getattr(x, "vm", False): return True
        return False
    def gap(self, n, rd, extra, sm, nvm):
        picks = []
        while len(picks) < nvm and self.vq and self.vq[0][0] <= n:
            picks.append(self.vq.pop(0))
            if picks[-1][1] and len(picks) > 1:
                self.vq.insert(0, picks.pop()); break
        if picks: self.run(picks[0][1])
        self.run(rd)
        parts = len(picks) + 1
        cuts = spread(len(extra), parts)
        pos = 0
        for k in range(parts):
            self.run(extra[pos:pos + cuts[k]]); pos += cuts[k]
            if k == 0: self.run(sm)
            if k < len(picks):
                self.run(picks[k][2]); self.run(picks[k][3])
    def gemm1(self, typ, nsteps, front, queue, rate, bars, vrate):
        e = self.e
        e.wait(vm=self.marks[("chunk", 0)][0])
        e.barrier()
        self.stamp(2)
        self.run(self.g_reads(0))
        q = []
        for n in range(nsteps):
            mf = self.g_mfmas(n, typ)
            sm = self.g_small(n)
            rd = self.g_reads(n + 1) if n + 1 < nsteps else []
            q += queue.get(n, [])
            r = rate(n)
            extra = list(front.get(n, [])) + q[:r]; q = q[r:]
            k = len(mf)
            per = spread(len(extra), k); pers = spread(len(sm), k)
            perr = spread(len(rd), k - 1) + [0]
            vr_ = vrate(n)
            pos = ps = pr = 0
            self.run(("waitlg", "frag", n))
            if (n & 3) == 0 and n: self.stamp(2 + (n >> 2))
            for i in range(k):
                self.run(mf[i])
                if i == 0 and n in bars:
                    pre, post = bars[n]
                    self.run(pre)
                    e.barrier()
                    q = list(post) + q
                ex = extra[pos:pos + per[i]]
                nv = vr_[i] - (1 if self.has_vm(ex) else 0)
                self.gap(n, rd[pr:pr + perr[i]], ex, sm[ps:ps + pers[i]], max(nv, 0))
                pos += per[i]; ps += pers[i]; pr += perr[i]
        self.stamp(2 + (nsteps >> 2))
        return q
    def stats_final(self, typ):
        g0, g1 = GRAM, GRAM + 4
        t0, t1, t2 = "v221", "v222", "v223"
        it = []
        for m, a, b in ((0x22222222, 0, 1), (0x88888888, 2, 3), (0xcccccccc, 0, 2)):
            it.append(["s_mov_b32 s84, 0x%x" % m, "s_mov_b32 s85, 0x%x" % m] +
                      ["v_cndmask_b32 v%d, v%d, v%d, %s" % (g + a, g + a, g + b, sM1) for g in (g0, g1)])
        it += ["s_lshl_b32 %s, %s, 8" % (sq0, sWAVE), "s_add_u32 %s, %s, %d" % (sq0, sq0, RS),
               "v_and_b32 %s, 15, v0" % t0, "v_lshl_add_u32 %s, %s, 2, %s" % (t0, t0, sq0),
               "v_and_b32 %s, 31, v0" % vA0, "v_lshl_add_u32 %s, %s, 2, %s" % (vA0, vA0, sq0),
               ["s_mov_b32 s84, 0x00f0000f", "s_mov_b32 s85, 0xf0000f00", "s_mov_b64 exec, %s" % sM1,
                "ds_write_b32 %s, v%d" % (t0, g0), "ds_write_b32 %s, v%d offset:64" % (t0, g1), "s_mov_b64 exec, -1"],
               "ds_read_b32 %s, %s" % (t1, vA0),
               "v_mul_f32 %s, 0x3b000000, v%d" % (t0, SUMA),
               "v_mov_b32 v%d, 0" % (VQ + 2), "v_mov_b32 v%d, 0" % (VQ + 3),
               "v_mov_b32 v%d, 0" % (UQ0 + 2), "v_mov_b32 v%d, 0" % (UQ0 + 3),
               "v_mul_f32 %s, 0x3b000000, %s" % (t1, t1),
               "v_fma_f32 %s, -%s, %s, %s" % (t1, t0, t0, t1),
               "v_max_f32 %s, 0, %s" % (t1, t1),
               "v_cvt_pk_bf16_f32 %s, -%s, %s" % (t2, t0, t1),
               "v_and_b32 %s, 0xffff0000, %s" % (t1, t2),
               "v_lshlrev_b32 %s, 16, %s" % (t0, t2),
               "v_add_f32 %s, 0x3727c5ac, %s" % (t1, t1),
               "v_cvt_pk_bf16_f32 %s, %s, %s" % (t1, t1, t1),
               "v_lshlrev_b32 %s, 16, %s" % (t1, t1),
               "v_sqrt_f32 %s, %s" % (t1, t1),
               "v_cvt_pk_bf16_f32 v%d, %s, %s" % (VQ, t0, t0),
               "v_cvt_pk_bf16_f32 v%d, %s, %s" % (VQ + 1, t1, t0),
               "v_cndmask_b32 v%d, 0, v%d, %s" % (VQ, VQ, sLO),
               "v_lshlrev_b32 %s, 16, v%d" % (t1, VQ + 1),
               "v_cndmask_b32 v%d, 0, v%d, %s" % (VQ + 1, VQ + 1, sLO),
               "v_rcp_f32 %s, %s" % (vRI, t1)]
        return it
    def cs_write(self, k, acc, ncb):
        it = ["s_lshl_b32 s3, %s, 10" % sWAVE, "s_add_u32 s3, s3, %d" % CSX[k], "v_add_u32 %s, s3, %s" % (vT, vL16)]
        for i in range(1, ncb): it.append("v_mov_b32 v%d, v%d" % (acc + i, acc + 4 * i))
        it += ["ds_write_b128 %s, %s" % (vT, vr(acc)), ("mark", "csw", k)]
        return it
    def cs_final(self, k, ncb, tmp):
        it = ["v_add_u32 %s, %d, %s" % (vT, CSX[k], vL16)]
        for w in range(4):
            it.append("ds_read_b128 %s, %s offset:%d" % (vr(tmp + 4 * w), vT, w * 1024))
        for i in range(ncb):
            it.append("v_add_f32 v%d, v%d, v%d" % (tmp + i, tmp + i, tmp + 4 + i))
            it.append("v_add_f32 v%d, v%d, v%d" % (tmp + 8 + i, tmp + 8 + i, tmp + 12 + i))
        for i in range(ncb):
            it.append("v_add_f32 v%d, v%d, v%d" % (CS + i, tmp + i, tmp + 8 + i))
        return it
    def fold(self, acc, ci, uq, b, normal=False):
        c = "v%d" % (CS + ci); t0, t1 = vA1, vA2t
        it = ["v_cvt_pk_bf16_f32 %s, %s, %s" % (t0, c, c), "v_lshlrev_b32 %s, 16, %s" % (t0, t0), "v_sub_f32 %s, %s, %s" % (t0, c, t0),
              "v_cvt_pk_bf16_f32 v%d, %s, %s" % (uq, c, t0), "v_and_b32 %s, 0xffff0000, v%d" % (t1, uq), "v_sub_f32 %s, %s, %s" % (t0, t0, t1)]
        if b is not None:
            it += ["v_lshlrev_b32 v%d, 16, v%d" % (b, b), "v_cvt_pk_bf16_f32 v%d, v%d, %s" % (uq + 1, b, t0)]
        else:
            it += ["v_cvt_pk_bf16_f32 v%d, 0, %s" % (uq + 1, t0)]
        d = vr(acc, 16)
        a_, b_ = (vr(VQ), vr(uq)) if normal else (vr(uq), vr(VQ))
        it.append("%s %s, %s, %s, %s" % (MF, d, a_, b_, d))
        return it
    def h_epi(self, accs, cb0, kst, uqs, Ps, tmp):
        it = []
        n = len(accs)
        it += self.fold(accs[0], 0, uqs[0], B1V + cb0)
        for ci in range(n):
            a = accs[ci]; P = Ps[ci % len(Ps)]
            if ci + 1 < n: it += self.fold(accs[ci + 1], ci + 1, uqs[(ci + 1) % len(uqs)], B1V + cb0 + ci + 1)
            for g in range(4):
                for j in range(4): it.append("v_max_f32 v%d, 0, v%d" % (a + 4 * g + j, a + 4 * g + j))
                for j in range(4): it.append("v_mul_f32 v%d, v%d, v%d" % (a + 4 * g + j, a + 4 * g + j, a + 4 * g + j))
                for j in range(2): it.append("v_cvt_pk_bf16_f32 v%d, v%d, v%d" % (P + 2 * g + j, a + 4 * g + 2 * j, a + 4 * g + 2 * j + 1))
                if g & 1:
                    so, imm = kst(cb0 + ci)
                    it.append("buffer_store_dwordx4 %s, %s, %s, %s offen offset:%d sc1" % (vr(P + 4 * (g >> 1)), vL16, SWS, so, imm + (g >> 1) * 1024))
        return it
    def phi4(self, a, ri, tt):
        it = []
        for j in range(4): it.append("v_fma_f32 v%d, v%d, %s, %s" % (a + j, a + j, ri(j), sEPS6))
        for j in range(4): it.append("v_mul_f32 %s, %s, v%d" % (tt[j], sLOG2E, a + j))
        for j in range(4):
            it.append("v_exp_f32_e64 %s, %s clamp" % (tt[j], tt[j]))
            it.append("v_max_f32 v%d, %s, v%d" % (a + j, sEPS6, a + j))
        for j in range(4): it.append("v_add_f32 v%d, v%d, %s" % (a + j, a + j, tt[j]))
        return it
    def a_seq(self):
        seq = []
        sp = self.o.get("split", 8)
        for n in range(28 - sp): seq += [(1, n, 0), (1, n, 1)]
        for rbk in range(2): seq += [(1, n, rbk) for n in range(28 - sp, 28)]
        for rbk in range(2): seq += [(0, k, rbk) for k in range(8)]
        return seq
    def a_load(self, i, at):
        ffn, n, rbk = self.a_seq()[i]
        k, base = (KORD[n], sAW) if ffn else (n, sAO)
        pre = []
        seq = self.a_seq()
        first = lambda st: min(x for x in range(72) if (seq[x][0] and seq[x][1] >= st))
        if i in (first(16), first(24), 56): pre.append(self.poll_check)
        if (base, k >> 2) != self.a_grp:
            pre.append("s_add_u32 %s, %s, %d" % (sFL2, base, (k >> 2) * 4096))
            self.a_grp = (base, k >> 2)
        return (at, pre, "buffer_load_dwordx4 %s, %s, %s, %s offen offset:%d sc1" % (vr(AR + 4 * (i & 15)), vA2 if rbk else vL16, SWS, sFL2, (k & 3) * 1024), [])
    a_grp = None
    def p2_mfmas(self, n):
        out = []
        seq = self.a_seq()
        for i in (2 * n, 2 * n + 1):
            ffn, m, rbk = seq[i]
            t = (m >> 1) if ffn else 14 + (m >> 1)
            pb = self.pslot(t) + 8 * (m & 1)
            for cbk in range(2):
                d = vr((ACCO if ffn else ACCS) + 32 * rbk + 16 * cbk, 16)
                out.append("%s %s, %s, %s, %s" % (MF, d, ar(pb + 4 * cbk), vr(AR + 4 * (i & 15)), "0" if m == 0 else d))
        return out
    def poll_fh(self, stage):
        return self.poll_issue(vPO, ["s_mul_i32 %s, %s, 24" % (sFL, sRT), "s_add_u32 %s, %s, %s" % (sFL, sWAVE, sFL), "s_lshl_b32 %s, %s, 8" % (sFL, sFL),
                                     "s_add_u32 %s, %s, %d" % (sFL, sFL, FH + stage * 2048)])
    def poll_fo(self):
        return self.poll_issue(vPO, ["s_lshl3_add_u32 %s, %s, %s" % (sFL, sRT, sWAVE), "s_lshl_b32 %s, %s, 8" % (sFL, sFL),
                                     "s_add_u32 %s, %s, %d" % (sFL, sFL, FO)])
    def ex_addr(self):
        it = ["v_and_b32 v8, 31, v0", "v_lshrrev_b32 v9, 5, v0", "v_and_b32 v14, 7, v0",
              "v_xor_b32 v9, v9, v14", "v_lshlrev_b32 v9, 4, v9", "v_lshl_add_u32 v9, v8, 8, v9",
              "s_lshl_b32 %s, %s, 14" % (sq0, sWAVE), "v_add_u32 v2, %s, v9" % sq0]
        for g in range(1, 4): it.append("v_xor_b32 v%d, %d, v2" % (2 + g, g * 32))
        it += ["v_lshrrev_b32 v8, 3, v0", "v_lshlrev_b32 v9, 1, v14", "v_xor_b32 v9, v9, v8", "v_lshlrev_b32 v9, 4, v9",
               "v_lshl_add_u32 v9, v8, 8, v9", "s_lshl_b32 %s, %s, 11" % (sq0, sWAVE), "v_add_u32 v6, %s, v9" % sq0,
               "v_xor_b32 v7, 16, v6", "v_add_u32 v28, %d, v6" % XW, "v_add_u32 v29, %d, v7" % XW,
               "v_add_u32 v30, %d, v2" % XW,
               "v_lshlrev_b32 v9, 4, v14", "v_lshl_add_u32 v15, v8, 10, v9", "v_lshlrev_b32 v8, 2, v8",
               "s_lshl3_add_u32 %s, %s, %s" % (sq0, sRT, sWAVE), "s_lshl_b32 %s, %s, 13" % (sq1, sq0),
               "s_add_u32 %s, %s, %s" % (sOUT0, sq1, sBB), "s_add_u32 %s, %s, 32768" % (sOUT1, sOUT0),
               "s_lshl_b32 %s, %s, 5" % (sq0, sq0), "s_lshl_b32 %s, %s, 14" % (sq1, sWAVE), "s_add_u32 %s, %s, %s" % (sq0, sq0, sq1), "s_add_u32 %s, %s, %d" % (sq0, sq0, RV),
               "buffer_load_dwordx4 v[16:19], v15, %s, %s offen" % (SX, sOUT0),
               "buffer_load_dwordx4 v[20:23], v15, %s, %s offen" % (SX, sOUT1),
               "buffer_load_dwordx4 v[24:27], v9, %s, %s offen" % (SB2, sBB),
               "buffer_load_dword v246, v8, %s, %s offen sc1" % (SWS, sq0),
               "buffer_load_dword v247, v8, %s, %s offen offset:128 sc1" % (SWS, sq0),
               "v_xor_b32 v8, 32, v30", "v_xor_b32 v9, 64, v30", "v_xor_b32 v14, 96, v30"]
        return it
    def ex_write(self, acc, regs, rbks):
        it = []
        for rbk in rbks:
            for cbk in range(2):
                for g in range(4):
                    it.append("ds_write_b128 %s, %s offset:%d" % (regs[g], vr(acc + 32 * rbk + 16 * cbk + 4 * g), rbk * 8192 + cbk * 128))
        return it
    def silu_items(self, q):
        O = ACCO + 32 * q
        it = []
        for b in range(2):
            for w in range(4):
                it.append("ds_read_b128 %s, v%d offset:%d" % (vr(O + 16 * b + 4 * w), 6 + b, w * 16384 + q * 8192))
        if q == 0:
            for j in range(4):
                it.append("v_lshlrev_b32 v%d, 16, v%d" % (10 + j, 24 + j))
                it.append("v_and_b32 v%d, 0xffff0000, v%d" % (24 + j, 24 + j))
            it.append("s_mov_b32 %s, 0xbfb8aa3b" % sq2)
        for b in range(2):
            o0 = O + 16 * b; G = 224 + 8 * q + 4 * b
            b2 = lambda j: (10 if (j & 1) == 0 else 24) + 2 * b + (j >> 1)
            for j in range(4): it.append("v_add_f32 v%d, v%d, v%d" % (o0 + j, o0 + j, o0 + 4 + j))
            for j in range(4): it.append("v_add_f32 v%d, v%d, v%d" % (o0 + 8 + j, o0 + 8 + j, o0 + 12 + j))
            for j in range(4): it.append("v_add_f32 v%d, v%d, v%d" % (o0 + j, o0 + j, o0 + 8 + j))
            for j in range(4): it.append("v_fma_f32 v%d, v%d, v%d, v%d" % (o0 + j, o0 + j, 246 + q, b2(j)))
            for j in range(4): it.append("v_mul_f32 v%d, %s, v%d" % (o0 + 4 + j, sq2, o0 + j))
            for j in range(4): it.append("v_exp_f32 v%d, v%d" % (o0 + 4 + j, o0 + 4 + j))
            for j in range(4): it.append("v_add_f32 v%d, 1.0, v%d" % (o0 + 4 + j, o0 + 4 + j))
            for j in range(4): it.append("v_rcp_f32 v%d, v%d" % (o0 + 4 + j, o0 + 4 + j))
            for j in range(4): it.append("v_mul_f32 v%d, v%d, v%d" % (G + j, o0 + j, o0 + 4 + j))
        return it
    def fin_items(self, q):
        S = ACCO + 32 * q; X = (32 if q == 0 else 48)
        it = []
        for b in range(2):
            for w in range(4):
                it.append("ds_read_b128 %s, v%d offset:%d" % (vr(S + 16 * b + 4 * w), 28 + b, w * 16384 + q * 8192))
        for j in range(4):
            it.append("v_lshlrev_b32 v%d, 16, v%d" % (X + 2 * j, 16 + 4 * q + j))
            it.append("v_and_b32 v%d, 0xffff0000, v%d" % (X + 1 + 2 * j, 16 + 4 * q + j))
        for b in range(2):
            s0 = S + 16 * b
            for j in (0, 2): it.append("v_pk_add_f32 %s, %s, %s" % (vr(s0 + j, 2), vr(s0 + j, 2), vr(s0 + 4 + j, 2)))
            for j in (0, 2): it.append("v_pk_add_f32 %s, %s, %s" % (vr(s0 + 8 + j, 2), vr(s0 + 8 + j, 2), vr(s0 + 12 + j, 2)))
            for j in (0, 2): it.append("v_pk_add_f32 %s, %s, %s" % (vr(s0 + j, 2), vr(s0 + j, 2), vr(s0 + 8 + j, 2)))
            for j in (0, 2): it.append("v_pk_fma_f32 %s, %s, %s, %s" % (vr(X + 4 * b + j, 2), vr(s0 + j, 2), vr(224 + 8 * q + 4 * b + j, 2), vr(X + 4 * b + j, 2)))
        for j in range(4): it.append("v_cvt_pk_bf16_f32 v%d, v%d, v%d" % (X + 8 + j, X + 2 * j, X + 1 + 2 * j))
        it.append("buffer_store_dwordx4 %s, v15, %s, %s offen" % (vr(X + 8), SOUT, sOUT0 if q == 0 else sOUT1))
        return it
    def p2(self, nd, nt, na, hooks, rate, pollat):
        e = self.e
        D = self.o.get("p2d", 14)
        q = []
        bar = lambda: (e.wait(lg=e.lg_seq), e.barrier())
        wo = ["v2", "v3", "v4", "v5"]; wsr = ["v30", "v8", "v9", "v14"]
        sp = self.o.get("split", 8)
        n0 = 28 - sp // 2
        hooks.setdefault(n0, []).extend(self.ex_write(ACCO, wo, [0]) + [bar] + self.silu_items(0))
        hooks.setdefault(28, []).extend(self.ex_write(ACCO, wo, [1]) + [bar] + self.silu_items(1))
        hooks.setdefault(32, []).extend(self.ex_write(ACCS, wsr, [0]))
        for n in range(36):
            extra = []
            if nt < 18 and ("pdma", nt) in self.marks and (nt < 16 or n >= 2 * (nt - 16) + 2) and ((n & 1) == 0 or nt < 12):
                extra += self.piece_tr(nt); nt += 1
            while na < 72 and na < 2 * n + D:
                self.vq.append(self.a_load(na, n)); na += 1
            if nd < 18 and nd - nt < 4 and (n & 1) == 1:
                self.vq += self.piece_dma(nd, n); nd += 1
            if n in pollat: extra.append(pollat[n])
            q += hooks.get(n, [])
            r = rate(n)
            extra += q[:r]; q = q[r:]
            mf = self.p2_mfmas(n)
            per = spread(len(extra), 4)
            pos = 0
            for i in range(4):
                self.run(mf[i])
                ex = extra[pos:pos + per[i]]
                self.gap(n, [], ex, [], 0 if self.has_vm(ex) else 1)
                pos += per[i]
            if (n & 3) == 3: self.stamp(24 + (n >> 2))
        assert not self.vq and nt == 18
        self.run(q)
        bar()
        w1 = self.ex_write(ACCS, wsr, [1]); f0 = self.fin_items(0)
        self.run(f0[:8])
        f0 = f0[8:]
        for k in range(8):
            self.run(w1[k]); self.run(f0[:4]); f0 = f0[4:]
        self.run(f0)
        bar()
        self.stamp(33)
        self.run(self.fin_items(1))
        self.stamp(34, last=True)
        e("s_endpgm")
    def base_front(self, typ):
        f = {}
        def add(n, g): f.setdefault(n, []).append(g)
        vq = self.dma_a(2, 0) + self.dma_a(3, 0) + self.touch(self.o.get("tat", 4))
        for c in range(4, 8): vq += self.dma_a(c, 4 * (c - 4) + 3)
        vq += self.dma_b1(8, 19) + self.dma_b1(9, 19) + self.piece_dma(0, 20)
        vq += self.dma_b1(10, 23) + self.dma_b1(11, 23) + self.piece_dma(1, 24)
        vq += self.dma_b1(12, 27) + self.dma_b1(13, 27) + self.piece_dma(2, 28)
        vq += self.dma_b1(14, 31) + self.dma_b1(15, 31) + self.piece_dma(3, 32)
        self.vq = vq
        return f, add
    def vrate(self, n):
        if n < 32: return [0, 1, 1, 1] if (n & 1) else [0, 1, 1, 0]
        return [1, 1]
    def base_bars(self):
        bars = {}
        for c in range(7): bars[4 * c + 3] = ([("waitvm", "chunk", c + 1)], [])
        bars[31] = ([("waitvm", "chunk", 9), ("waitlg", "csw", 0)], [])
        for c in (9, 11, 13): bars[4 * c + 3] = ([("waitvm", "chunk", c + 2)], [])
        return bars
    def path_B(self):
        e = self.e; o = self.o
        e.label("L_typeB")
        e("v_and_b32 %s, 31, v0" % vT)
        e("v_lshlrev_b32 %s, 1, %s" % (vT, vT))
        for cb in range(6): e("buffer_load_ushort v%d, %s, %s, %s offen offset:%d" % (B1V + cb, vT, SB1, st4, cb * 64))
        e("buffer_load_ushort v%d, %s, %s, %s offen" % (B1V + 6, vT, SB1, sFL2))
        nissue, ncheck = self.get_nonce()
        front, add = self.base_front("B")
        bars = self.base_bars()
        add(10, nissue); add(18, ncheck)
        add(30, self.cs_write(0, CSAACC, 4))
        def kst(cb):
            if cb < 2: return sHA0, cb * 2048
            if cb < 4: return sHA1, (cb - 2) * 2048
            if cb < 6: return sHB1, (cb - 4) * 2048
            return sHB2, 0
        def flag_h(stage):
            return [("waitvm", "hst", stage)] + self.flag_store(
                ["s_lshr_b32 s3, %s, 1" % sR, "s_mul_i32 s3, s3, 48", "s_add_u32 s3, %s, s3" % sIJ,
                 "s_and_b32 %s, %s, 1" % (sq3, sR), "s_lshl3_add_u32 s3, %s, s3" % sq3, "s_lshl_b32 s3, s3, 7",
                 "s_add_u32 s3, s3, %d" % (FH + stage * 2048)])
        UQ1 = 192
        rv = ["v_mul_f32 %s, %s, %s" % (vA1, vRI, vRI), "v_and_b32 %s, 31, v0" % vA2t, "v_lshlrev_b32 %s, 2, %s" % (vA2t, vA2t),
              "s_lshl_b32 %s, %s, 6" % (sq0, sIJ), "s_add_u32 %s, %s, %s" % (sq0, sq0, sR), "s_lshl_b32 %s, %s, 7" % (sq0, sq0), "s_add_u32 %s, %s, %d" % (sq0, sq0, RV),
              ["s_mov_b64 exec, %s" % sLO, "buffer_store_dword %s, %s, %s, %s offen sc1" % (vA1, vA2t, SWS, sq0), "s_mov_b64 exec, -1"]]
        queue = {}
        queue[32] = (self.stats_final("B") + self.cs_final(0, 4, 196) + ["v_mov_b32 v%d, 0" % (UQ1 + 2), "v_mov_b32 v%d, 0" % (UQ1 + 3)] + rv
                     + self.h_epi([ACCA + 16 * i for i in range(4)], 0, kst, [UQ0, UQ1], [196, 204], None) + [("mark", "hst", 0)])
        fa = o.get("fha", 58)
        add(fa, flag_h(0))
        add(62, self.cs_write(1, CSBACC, 2))
        bars[63] = ([("waitvm", "chunk", 23), ("waitlg", "csw", 1)], [])
        queue[64] = self.cs_final(1, 2, 196) + self.h_epi([ACCB, ACCB + 16], 4, kst, [UQ0, UQ1], [196, 204], None) + [("mark", "hst", 1)]
        add(79, self.cs_write(2, CSBACC + 8, 1))
        pt = [30, 33, 36, 39, 42, 45, 48, 51, 67, 70, 73, 76]
        for t, n in enumerate(pt):
            for x in self.piece_tr(t): add(n, x)
        vq = self.vq
        vq += self.piece_dma(4, 33) + self.piece_dma(5, 35) + self.piece_dma(6, 38)
        for j in range(4): vq += self.dma_b2(j, 40)
        vq += self.piece_dma(7, 41) + self.piece_dma(8, 44) + self.piece_dma(9, 47)
        for j in range(4, 8): vq += self.dma_b2(j, 48)
        vq += self.piece_dma(10, 50) + self.piece_dma(11, 53)
        add(o.get("pa", 62), self.poll_fh(0))
        vq += self.piece_dma(12, 68)
        na = 14
        first = True
        for k in range(na):
            x = self.a_load(k, o.get("pac", 69))
            if first: x = (x[0], [self.poll_check] + x[1], x[2], x[3]); first = False
            vq.append(x)
        rate = lambda n: 0 if n < 32 else (o.get("rb1", 12) if n < 64 else o.get("rb2", 12))
        rest = self.gemm1("B", 80, front, queue, rate, bars, self.vrate)
        self.run(rest)
        e.wait(lg=e.lg_seq)
        e.barrier()
        self.stamp(23)
        hooks = {}
        hooks[0] = (self.cs_final(2, 1, 144) + self.h_epi([ACCB + 32], 6, kst, [UQ0], [144], None) + [("mark", "hst", 2)]
                    + flag_h(1))
        hooks[o.get("fhb2", 6)] = flag_h(2)
        hooks[9] = self.ex_addr()
        pollat = {o.get("pb1", 5): self.poll_fh(1), o.get("pb2", 11): self.poll_fh(2), o.get("po", 17): self.poll_fo()}
        self.p2(13, 12, na, hooks, lambda n: 28 if n < 3 else (12 if n < 24 else 24), pollat)
    def path_A(self):
        e = self.e; o = self.o
        nissue, ncheck = self.get_nonce()
        front, add = self.base_front("A")
        bars = self.base_bars()
        add(10, nissue); add(18, ncheck)
        add(30, self.cs_write(0, CSAACC, 4))
        RI, UQ1, PK, VV, ONES = 192, 208, 212, 240, 128
        tt = ["v132", "v133", "v134", "v135"]
        it = self.stats_final("A")
        it += ["v_lshrrev_b32 %s, 5, v0" % vA1, "v_lshl_add_u32 %s, %s, 4, %s" % (vA1, vA1, sq0),
               "ds_write_b32 %s, %s" % (vA0, vRI)]
        it += self.cs_final(0, 4, 192)
        for g in range(4): it.append("ds_read_b128 %s, %s offset:%d" % (vr(RI + 4 * g), vA1, g * 32))
        it += ["v_mov_b32 v%d, 0" % (UQ1 + 2), "v_mov_b32 v%d, 0" % (UQ1 + 3)]
        it += self.fold(ACCA, 0, UQ0, None, True) + self.fold(ACCA + 32, 2, UQ1, None, True)
        it += ["s_lshl_b32 %s, %s, 12" % (sq0, sWAVE), "s_add_u32 %s, %s, %d" % (sq0, sq0, KVX), "v_add_u32 v136, %s, %s" % (sq0, vL16),
               "s_lshl_b32 %s, %s, 8" % (sq0, sWAVE), "s_add_u32 %s, %s, %d" % (sq0, sq0, ZX),
               "v_lshrrev_b32 v137, 5, v0", "v_lshl_add_u32 v137, v137, 4, %s" % sq0]
        for j in range(4): it.append("v_mov_b32 v%d, %s" % (ONES + j, sONES))
        it += self.fold(ACCA + 16, 1, UQ0, None, True) + self.fold(ACCA + 48, 3, UQ1, None, True)
        posts = []
        for p in range(2):
            ak = ACCA + 16 * p; av = ACCA + 32 + 16 * p
            for g in range(4):
                it += self.phi4(ak + 4 * g, lambda j: "v%d" % (RI + 4 * g + j), tt)
                for j in range(4): it.append("v_mul_f32 v%d, v%d, v%d" % (av + 4 * g + j, av + 4 * g + j, RI + 4 * g + j))
                for j in range(2): it.append("v_cvt_pk_bf16_f32 v%d, v%d, v%d" % (PK + 2 * g + j, ak + 4 * g + 2 * j, ak + 4 * g + 2 * j + 1))
                for j in range(2): it.append("v_cvt_pk_bf16_f32 v%d, v%d, v%d" % (VV + 2 * g + j, av + 4 * g + 2 * j, av + 4 * g + 2 * j + 1))
                if p == 1 and g == 0: it += posts[0]
            it.append("%s %s, %s, %s, 0" % (MF, vr(ak, 16), vr(PK), vr(VV)))
            it.append("%s %s, %s, %s, 0" % (MF, vr(av, 16), vr(PK), vr(ONES)))
            it.append("%s %s, %s, %s, %s" % (MF, vr(ak, 16), vr(PK + 4), vr(VV + 4), vr(ak, 16)))
            it.append("%s %s, %s, %s, %s" % (MF, vr(av, 16), vr(PK + 4), vr(ONES), vr(av, 16)))
            post = []
            for i in range(8): post.append("v_cndmask_b32 v%d, v%d, v%d, %s" % (ak + i, ak + i, ak + 8 + i, sMASK))
            for part in range(2): post.append("ds_write_b128 v136, %s offset:%d" % (vr(ak + 4 * part), p * 2048 + part * 1024))
            post.append(["s_mov_b32 s84, 1", "s_mov_b32 s85, 1", "s_mov_b64 exec, %s" % sM1] +
                        ["ds_write_b128 v137, %s offset:%d" % (vr(av + 4 * g), (2 * p + (g >> 1)) * 64 + (g & 1) * 32) for g in range(4)] +
                        ["s_mov_b64 exec, -1"])
            posts.append(post)
        it += ["v_and_b32 v138, 15, v0", "v_bfe_u32 v139, v0, 4, 1", "v_lshl_add_u32 v138, v139, 5, v138",
               "s_and_b32 %s, %s, 1" % (sq0, sWAVE), "s_lshl_b32 %s, %s, 4" % (sq0, sq0), "v_add_u32 v138, %s, v138" % sq0,
               "v_lshlrev_b32 v138, 4, v138", "v_lshrrev_b32 v139, 5, v0", "v_lshl_add_u32 v138, v139, 10, v138",
               "s_lshr_b32 %s, %s, 1" % (sq0, sWAVE), "s_lshl_b32 %s, %s, 11" % (sq0, sq0), "s_add_u32 %s, %s, %d" % (sq0, sq0, KVX),
               "v_add_u32 v138, %s, v138" % sq0,
               "v_and_b32 v140, 48, v0", "s_lshl_b32 %s, %s, 6" % (sq0, sWAVE), "s_add_u32 %s, %s, %d" % (sq0, sq0, ZX),
               "v_add_u32 v139, %s, v140" % sq0]
        it += posts[1] + [("mark", "kvw", 0)]
        queue = {32: it}
        KB = o.get("kvbar", 11)
        T = 192
        red = []
        for w in range(4): red.append("ds_read_b128 %s, v138 offset:%d" % (vr(T + 4 * w), w * 4096))
        for w in range(4): red.append("ds_read_b128 %s, v139 offset:%d" % (vr(T + 16 + 4 * w), w * 256))
        red += ["s_lshl4_add_u32 %s, %s, %s" % (sq0, sHEAD, sRB),
                "s_lshl_b32 %s, %s, 10" % (sq1, sq0), "s_add_u32 %s, %s, %d" % (sq1, sq1, KVP),
                "s_lshl_b32 %s, %s, 7" % (sq2, sq0), "s_add_u32 %s, %s, %d" % (sq2, sq2, ZP)]
        for b in (T, T + 16):
            for j in range(4): red.append("v_add_f32 v%d, v%d, v%d" % (b + j, b + j, b + 4 + j))
            for j in range(4): red.append("v_add_f32 v%d, v%d, v%d" % (b + 8 + j, b + 8 + j, b + 12 + j))
            for j in range(4): red.append("v_add_f32 v%d, v%d, v%d" % (b + j, b + j, b + 8 + j))
        red.append("buffer_store_dwordx4 %s, %s, %s, %s offen sc1" % (vr(T), vL16, SWS, sq1))
        red.append(["s_mov_b32 s84, 0x00010001", "s_mov_b32 s85, 0x00010001", "s_mov_b64 exec, %s" % sM1,
                    "buffer_store_dwordx4 %s, v140, %s, %s offen sc1" % (vr(T + 16), SWS, sq2), "s_mov_b64 exec, -1"])
        red.append(("mark", "kvst", 0))
        bars[4 * KB + 3] = (bars[4 * KB + 3][0] + [("waitlg", "kvw", 0)], red)
        flag_kv = [("waitvm", "kvst", 0)] + self.flag_store(["s_lshl4_add_u32 s3, %s, %s" % (sHEAD, sRB), "s_lshl_b32 s3, s3, 7", "s_add_u32 s3, s3, %d" % FKV])
        add(o.get("fkv", 57), flag_kv)
        add(62, self.cs_write(1, CSBACC, 2))
        bars[63] = ([lambda: e.wait(lg=e.lg_seq)], [])
        pt = [30, 33, 36, 39, 42, 45, 48, 51]
        for t, n in enumerate(pt):
            for x in self.piece_tr(t): add(n, x)
        for t in range(4, 12): self.vq += self.piece_dma(t, pt[t - 4] + 2)
        ra = -(-len(it) // (4 * KB + 3 - 32))
        rate = lambda n: 0 if n < 32 else ra
        rest = self.gemm1("A", 64, front, queue, rate, bars, self.vrate)
        assert not self.vq
        self.run(rest)
        self.stamp(19)
        self.poll_fh(0)()
        UQ1 = 144; tt = ["v148", "v149", "v150", "v151"]
        items = self.cs_final(1, 2, 192) + ["v_mov_b32 v%d, 0" % (UQ1 + 2), "v_mov_b32 v%d, 0" % (UQ1 + 3)]
        items += self.fold(ACCB, 0, UQ0, None) + self.fold(ACCB + 16, 1, UQ1, None)
        for cb in range(2):
            a = ACCB + 16 * cb
            for g in range(4):
                items += self.phi4(a + 4 * g, lambda j: vRI, tt)
                for j in range(2): items.append("v_cvt_pk_bf16_f32 v%d, v%d, v%d" % (PQ + 8 * cb + 2 * g + j, a + 4 * g + 2 * j, a + 4 * g + 2 * j + 1))
        h = o.get("qsplit", 110)
        self.run(items[:h])
        self.poll_check()
        na = 0
        rest = items[h:]
        for i in range(14):
            self.vm_now([self.a_load(na, 0)]); na += 1
            self.run(rest[:6]); rest = rest[6:]
        self.stamp(23)
        Q = [96 + 4 * i for i in range(8)] + [144 + 4 * i for i in range(4)] + [224 + 4 * i for i in range(5)]
        poll_kv = [["v_and_b32 v244, 15, v0", "v_lshlrev_b32 v244, 7, v244",
                    self.poll_issue("v244", ["s_lshl_b32 %s, %s, 11" % (sFL, sHEAD), "s_add_u32 %s, %s, %d" % (sFL, sFL, FKV)])]]
        kv1 = [self.poll_check,
               "s_lshl_b32 %s, %s, 14" % (sq0, sHEAD), "s_add_u32 %s, %s, %d" % (sq0, sq0, KVP),
               "s_lshl_b32 %s, %s, 11" % (sq1, sHEAD), "s_add_u32 %s, %s, %d" % (sq1, sq1, ZP),
               "v_and_b32 v244, 15, v0", "v_lshlrev_b32 v244, 7, v244", "v_and_b32 v245, 48, v0", "v_add_u32 v244, v244, v245",
               "buffer_load_dwordx4 %s, v244, %s, %s offen sc1" % (vr(Q[16]), SWS, sq1)]
        for r in range(16):
            if r and r % 4 == 0: kv1.append("s_add_u32 %s, %s, 4096" % (sq0, sq0))
            kv1.append("buffer_load_dwordx4 %s, %s, %s, %s offen offset:%d sc1" % (vr(Q[r]), vL16, SWS, sq0, (r & 3) * 1024))
        kv2 = []
        z = Q[16]
        for sh in (8, 4, 2, 1):
            for j in range(4): kv2.append("v_add_f32_dpp v%d, v%d, v%d row_ror:%d row_mask:0xf bank_mask:0xf" % (z + j, z + j, z + j, sh))
        kv2 += ["v_and_b32 v244, 15, v0", "v_bfe_u32 v245, v0, 4, 1", "v_lshl_add_u32 v244, v245, 5, v244", "v_lshlrev_b32 v244, 4, v244",
                "v_lshrrev_b32 v245, 5, v0", "v_lshl_add_u32 v244, v245, 3, v244",
                "s_lshl_b32 %s, %s, 10" % (sq0, sWAVE), "s_add_u32 %s, %s, %d" % (sq0, sq0, KVF), "v_add_u32 v244, %s, v244" % sq0,
                "v_cvt_pk_bf16_f32 v%d, v%d, v%d" % (z, z, z + 1), "v_cvt_pk_bf16_f32 v%d, v%d, v%d" % (z + 1, z + 2, z + 3),
                "ds_write_b64 v244, %s offset:256" % vr(z, 2)]
        stepw = 1
        while stepw < 16:
            for r in range(0, 16, 2 * stepw):
                for j in range(4): kv2.append("v_add_f32 v%d, v%d, v%d" % (Q[r] + j, Q[r] + j, Q[r + stepw] + j))
            stepw *= 2
        kv2 += ["v_cvt_pk_bf16_f32 v%d, v%d, v%d" % (Q[0], Q[0], Q[0] + 1), "v_cvt_pk_bf16_f32 v%d, v%d, v%d" % (Q[0] + 1, Q[0] + 2, Q[0] + 3),
                "ds_write_b64 v244, %s" % vr(Q[0], 2),
                "v_add_u32 v244, %d, %s" % (KVF, vL16),
                lambda: (e.wait(lg=e.lg_seq), e.barrier())]
        for hh in range(4): kv2.append("ds_read_b128 %s, v244 offset:%d" % (vr(144 + 4 * hh), hh * 1024))
        kv2 += ["s_lshl_b32 %s, %s, 12" % (sq0, sIJ), "s_add_u32 %s, %s, %d" % (sq0, sq0, 112 * 1024), "s_add_u32 %s, %s, %s" % (sq0, sq0, sHST)]
        for hp in range(2):
            for k2 in range(2):
                hh = 2 * hp + k2
                kv2.append("%s %s, %s, %s, 0" % (MF, vr(96 + 16 * k2, 16), vr(144 + 4 * hh), vr(PQ + 4 * hh)))
            for k2 in range(2):
                hh = 2 * hp + k2
                a = 96 + 16 * k2
                kv2.append("v_add_f32 v%d, %s, v%d" % (a + 8, sEPS6, a + 8))
                kv2.append("v_rcp_f32 v%d, v%d" % (a + 8, a + 8))
                for j in range(8): kv2.append("v_mul_f32 v%d, v%d, v%d" % (a + j, a + j, a + 8))
                for j in range(4): kv2.append("v_cvt_pk_bf16_f32 v%d, v%d, v%d" % (224 + 4 * hh + j, a + 2 * j, a + 2 * j + 1))
                kv2.append("buffer_store_dwordx4 %s, %s, %s, %s offen offset:%d sc1" % (vr(224 + 4 * hh), vL16, SWS, sq0, hh * 1024))
        kv2.append(("mark", "ost", 0))
        flag_o = [("waitvm", "ost", 0)] + self.flag_store(["s_lshl3_add_u32 s3, %s, %s" % (sR, sIJ), "s_lshl_b32 s3, s3, 7", "s_add_u32 s3, s3, %d" % FO])
        K1 = o.get("kvstep", 0)
        hooks = {}
        hooks[0] = rest
        hooks.setdefault(K1, []).extend(poll_kv)
        if o.get("nokv"): kv1 = []; kv2 = [("mark", "ost", 0)]
        hooks[K1 + 2] = kv1
        K2 = o.get("kv2", 4)
        hooks[K1 + K2] = kv2
        hooks[K1 + K2 + o.get("fo", 8)] = flag_o
        hooks[K1 + K2 + o.get("fo", 8) + 1] = self.ex_addr()
        pollat = {o.get("pb1a", 6): self.poll_fh(1), o.get("pb2", 11): self.poll_fh(2), o.get("po", 17): self.poll_fo()}
        self.p2(12, 8, na, hooks, lambda n: 40 if n < 24 else 24, pollat)
    def build(self):
        e = self.e
        self.prologue()
        snap = e.snapshot(); marks = dict(self.marks); ps = self.pend_stamp
        self.path_A()
        for s in self.slow: e.raw(s)
        self.slow = []
        e.restore(snap); self.marks = dict(marks); self.pend_stamp = ps; self.a_grp = None
        self.path_B()
        for s in self.slow: e.raw(s)
        e.label("L_exit")
        e.raw("\ts_endpgm")
        e.label("L_end")
        head = open("cdna_kernels/%s.s.ref" % NAME).read().split("; Override launch")[0]
        out = head
        out += "; @launch grid=(256,1,1) block=(256,1,1) lds=%d\n" % LDS_BYTES
        out += '.amdgcn_target "amdgcn-amd-amdhsa--gfx950"\n.text\n.globl %s_kernel\n.p2align 8\n.type %s_kernel,@function\n%s_kernel:\n' % (NAME, NAME, NAME)
        out += e.text()
        out += '.section .rodata,"a"\n.p2align 6\n.amdhsa_kernel %s_kernel\n' % NAME
        out += "  .amdhsa_next_free_vgpr 512\n  .amdhsa_next_free_sgpr 102\n  .amdhsa_accum_offset 256\n  .amdhsa_group_segment_fixed_size 0\n"
        out += "  .amdhsa_kernarg_size 88\n  .amdhsa_user_sgpr_count 2\n  .amdhsa_user_sgpr_kernarg_segment_ptr 1\n  .amdhsa_system_sgpr_workgroup_id_x 1\n.end_amdhsa_kernel\n"
        return out

if __name__ == "__main__":
    opt = {}
    out = "cdna_kernels/%s.s" % NAME
    for a in sys.argv[1:]:
        k, v = a.split("=")
        if k == "out": out = v
        else:
            try: v = int(v)
            except ValueError: pass
            opt[k] = v
    g = Gen(opt)
    s = g.build()
    open(out, "w").write(s)
    print("written", out, len(s.splitlines()), "lines", {k: v for k, v in sorted(g.e.count.items(), key=lambda x: -x[1])[:8]})
```

```python
import sys
from em import Em

NAME = "recurrent_scan__linear_attn_block__dense_activation_squared_relu__prompt"

KVP = 0x900000
ZP = 0x980000
FKV = 0x990000
FO = 0x9A0000
RV = 0x9B0000
FH = 0x9C0000
WS_BYTES = 0x9F0000
STAMP = 0x1000000
XW = 65536
MM = 131072
CSX = [MM, MM + 4096, MM + 8192]
KVX = MM + 12288
RS = MM + 28672
ZX = MM + 29696
KVF = MM
LDS_BYTES = 163840
SX, SW, SW2, SWO, SWS, SOUT, SB1, SB2, SDBG = "s[4:7]", "s[8:11]", "s[12:15]", "s[16:19]", "s[20:23]", "s[24:27]", "s[28:31]", "s[32:35]", "s[36:39]"
sWAVE, sRB, sIJ, sROT, sRT, sCC, sSTRIDE = "s40", "s41", "s42", "s43", "s44", "s45", "s46"
sXB, sWA, sWB, sWH, sS64, sM0X, sM0WA, sM0WB, sM0WH = "s47", "s48", "s49", "s50", "s51", "s52", "s53", "s54", "s55"
st0, st1, st2, st3 = "s56", "s57", "s58", "s59"
sNONCE = "s[60:61]"
sHST = "s62"; sTYPE = "s63"
sMASK = "s[64:65]"; sONES = "s66"; sAB = "s67"; sBB = "s68"; sSPIN = "s69"
sW2B = "s70"; sWOB = "s71"; sAW = "s72"; sAO = "s73"; sR = "s74"; sHEAD = "s75"
sHA0, sHA1, sHB1, sHB2 = "s76", "s77", "s78", "s79"
sq0, sq1, sq2, sq3 = "s80", "s81", "s82", "s83"
sM1 = "s[84:85]"; sLO = "s[86:87]"
sEPS6 = "s88"; sLOG2E = "s89"; sFL = "s90"; sFL2 = "s91"; sT0 = "s92"; st4 = "s93"; sTM = "s[94:95]"
sPC = "s[96:97]"; sOUT0 = "s98"; sOUT1 = "s99"; sPID = "s100"; sPSRC = "s101"
vL16 = "v1"
def vOX(q): return "v%d" % (2 + q)
def vOW(q): return "v%d" % (6 + q)
def vOB(q): return "v%d" % (10 + q)
vOH = "v14"
def vTW(s, cb): return "v%d" % (15 + 2 * s + cb)
def vXR(s): return "v%d" % (23 + s)
def vTH(s): return "v%d" % (27 + s)
vST = "v31"
ACCA, ACCB, BFR = 32, 96, 144
SEL = 176; CSBACC = 180
vSR = ["v200", "v201"]; SF = 204; SUMA = 212; GRAM = 216; CSAACC = 224
VQ = 224; vRI = "v228"; vA0 = "v229"; vA1 = "v230"; vA2t = "v231"; CS = 232; UQ0 = 236; B1V = 240; vT = "v247"
vTB = ["v248", "v249"]; vA2 = "v250"; vPO = "v251"; vPD = 252; vNO = 254
AR = 32; ACCO = 160; ACCS = 96
PQ = 128
KORD = list(range(0, 8)) + list(range(16, 24)) + [8, 9, 10, 11, 24, 25, 26, 27] + [12, 13, 14, 15]

def vr(a, n=4): return "v[%d:%d]" % (a, a + n - 1)
def ar(a, n=4): return "a[%d:%d]" % (a, a + n - 1)
MF = "v_mfma_f32_32x32x16_bf16"
MS = "v_mfma_f32_16x16x32_bf16"

def spread(n, k):
    return [(n * (i + 1)) // k - (n * i) // k for i in range(k)]

class Gen:
    def __init__(self, opt):
        self.o = opt
        self.e = Em()
        self.slow = []
        self.nlab = 0
        self.pend_stamp = None
        self.marks = {}
    def run(self, item):
        e = self.e
        if isinstance(item, str):
            if self.o.get("nores") and item.startswith("buffer_load") and ("v15," in item or "v[24:27]" in item or "v246" in item or "v247, v8" in item): return
            if self.o.get("nodatast") and item.startswith("buffer_store_dwordx4") and "sc1" in item: return
            if self.o.get("nostore") and item.startswith("buffer_store") and "sc1" in item: return
            e(item)
        elif isinstance(item, list):
            for x in item: self.run(x)
        elif callable(item): item()
        elif item[0] == "mark":
            self.marks[(item[1], item[2])] = (e.vm_seq, e.lg_seq)
        elif item[0] == "waitvm" and item[1] in ("hst", "kvst", "ost") and not self.o.get("noflag"):
            self.site("ack_%s%d" % (item[1], item[2]), lambda: e.wait(vm=self.marks[(item[1], item[2])][0]))
        elif item[0] == "waitvm" and item[1] == "chunk" and item[2] in (2, 3, 4, 9, 13, 23):
            self.site("chunk%d" % item[2], lambda: e.wait(vm=self.marks[(item[1], item[2])][0]))
        elif item[0] == "waitvm":
            if self.o.get("noflag") and item[1] in ("hst", "kvst", "ost"): return
            e.wait(vm=self.marks[(item[1], item[2])][0])
        elif item[0] == "waitlg":
            e.wait(lg=self.marks[(item[1], item[2])][1])
        elif item[0] == "need":
            assert (item[1], item[2]) in self.marks, item
    def site(self, name, fn):
        if self.o.get("stamps") != 3 or self.nsite.get(self.cur, 35) > 59:
            return fn()
        k = self.nsite.get(self.cur, 35); self.nsite[self.cur] = k + 2
        self.sites.setdefault(self.cur, []).append((name, k))
        self.stamp(k, force=True); self.e.smem_wait(); fn(); self.stamp(k + 1, force=True); self.e.smem_wait()
    nsite = {}; sites = {}; cur = "A"
    def stamp(self, idx, last=False, force=False):
        if not self.o.get("stamps"): return
        if self.o.get("stamps") == 2 and not last: return
        if self.o.get("stamps") in (3, 4) and not (last or force or idx in (1, 2, 10, 18, 23, 32)): return
        e = self.e
        if self.pend_stamp is not None:
            e("v_writelane_b32 %s, s94, %d" % (vST, self.pend_stamp))
        e.raw("\ts_memtime %s" % sTM)
        self.pend_stamp = idx
        if last:
            e.smem_wait()
            e("v_writelane_b32 %s, s94, %d" % (vST, idx))
            e.raw("\ts_memrealtime %s" % sTM)
            e.smem_wait()
            e("v_writelane_b32 %s, s94, 63" % vST)
            e("v_writelane_b32 %s, %s, 62" % (vST, sT0))
            if self.o.get("enc") is not None:
                self.nlab += 1; n = self.nlab
                e("s_cmp_lg_u32 s2, %d" % self.o.get("encwg", 8))
                e("s_cbranch_scc1 L_dbg%d" % n)
                if self.o["enc"] == 63:
                    e("s_sub_u32 s3, s94, %s" % sT0)
                    e("s_lshl3_add_u32 s3, s3, s94")
                    e.raw("L_enc%d:\n\ts_sleep 4\n\ts_memrealtime s[94:95]\n\ts_waitcnt lgkmcnt(0)\n\ts_sub_u32 s95, s3, s94\n\ts_cmp_gt_i32 s95, 0\n\ts_cbranch_scc1 L_enc%d" % (n, n))
                else:
                    e("v_readlane_b32 s3, %s, %d" % (vST, self.o["enc"]))
                    e("v_readlane_b32 s95, %s, 0" % vST)
                    e("s_nop 3")
                    e("s_sub_u32 s3, s3, s95")
                    e.raw("\ts_memtime s[94:95]\n\ts_waitcnt lgkmcnt(0)")
                    e("s_lshl3_add_u32 s3, s3, s94")
                    e.raw("L_enc%d:\n\ts_sleep 4\n\ts_memtime s[94:95]\n\ts_waitcnt lgkmcnt(0)\n\ts_sub_u32 s95, s3, s94\n\ts_cmp_gt_i32 s95, 0\n\ts_cbranch_scc1 L_enc%d" % (n, n))
                e.label("L_dbg%d" % n)
                return
            if self.o.get("dbgout"):
                self.nlab += 1; n = self.nlab
                e("s_cmp_lg_u32 %s, 0" % sWAVE)
                e("s_cbranch_scc1 L_dbg%d" % n)
                e("s_mov_b64 exec, 1")
                e("v_mov_b32 v2, s94"); e("v_mov_b32 v3, %s" % sT0); e("v_sub_u32 v4, 0, v3")
                e("buffer_atomic_umax v2, off, %s, 0 offset:12" % SDBG)
                e("buffer_atomic_umax v3, off, %s, 0 offset:16" % SDBG)
                e("buffer_atomic_umax v4, off, %s, 0 offset:8" % SDBG)
                e("s_and_b32 s95, s2, 127")
                e("s_cmp_lg_u32 s95, 8")
                e("s_cbranch_scc1 L_dbg%d" % n)
                e("v_readlane_b32 s94, %s, 0" % vST)
                e("s_lshr_b32 s95, s2, 7"); e("s_mul_i32 s95, s95, 20")
                for k, idx2 in enumerate((2, 10, 23, 32, 34)):
                    e("v_readlane_b32 s3, %s, %d" % (vST, idx2))
                    e("s_nop 3")
                    e("s_sub_u32 s3, s3, s94"); e("v_mov_b32 v2, s3")
                    e("buffer_store_dword v2, off, %s, s95 offset:%d" % (SDBG, 20 + 4 * k))
                e("s_cmp_lg_u32 s95, 0")
                e("s_cbranch_scc1 L_dbg%d" % n)
                e("v_readlane_b32 s3, %s, 63" % vST)
                e("s_nop 3")
                e("s_sub_u32 s3, s3, %s" % sT0); e("v_mov_b32 v2, s3")
                e("buffer_store_dword v2, off, %s, 0 offset:60" % SDBG)
                e.label("L_dbg%d" % n)
                return
            e("s_lshl_b32 s94, s2, 10")
            e("s_lshl_b32 s95, %s, 8" % sWAVE)
            e("s_add_u32 s94, s94, s95")
            e("s_add_u32 s94, s94, %d" % STAMP)
            e("v_lshlrev_b32 v0, 2, v0")
            e("buffer_store_dword %s, v0, %s, s94 offen" % (vST, SWS))
    def poll_again(self):
        def f():
            self.e("buffer_load_dwordx2 v[244:245], %s, %s, %s offen sc1" % (self.poll_voff, SWS, sFL))
            self.poll2 = self.e.vm_seq
        f.vm = True
        return f
    poll2 = None
    def poll_issue(self, voff, so):
        def f():
            for x in so: self.e(x)
            self.e("buffer_load_dwordx2 v[%d:%d], %s, %s, %s offen sc1" % (vPD, vPD + 1, voff, SWS, sFL))
            self.poll_voff = voff
        f.vm = True
        return f
    def poll_check(self):
        self.site("poll", self.poll_check_)
    def poll_check_(self):
        e = self.e
        if self.o.get("nopoll"): return
        self.nlab += 1
        n = self.nlab
        e("v_cmp_eq_u64 vcc, %s, v[%d:%d]" % (sNONCE, vPD, vPD + 1))
        e("s_cmp_eq_u64 vcc, exec")
        e("s_cbranch_scc0 L_slow%d" % n)
        e.label("L_back%d" % n)
        second = []
        if self.poll2 is not None:
            second = ["\ts_waitcnt vmcnt(%d)" % (e.vm_seq - self.poll2), "\tv_cmp_eq_u64 vcc, %s, v[244:245]" % sNONCE, "\ts_nop 0",
                      "\ts_cmp_eq_u64 vcc, exec", "\ts_cbranch_scc1 L_back%d" % n]
            self.poll2 = None
        self.slow += ["L_slow%d:" % n] + second + ["\ts_mov_b32 %s, 0" % sSPIN, "L_spin%d:" % n,
                      "\tbuffer_load_dwordx2 v[%d:%d], %s, %s, %s offen sc1" % (vPD, vPD + 1, self.poll_voff, SWS, sFL),
                      "\ts_waitcnt vmcnt(0)",
                      "\tv_cmp_eq_u64 vcc, %s, v[%d:%d]" % (sNONCE, vPD, vPD + 1),
                      "\ts_add_u32 %s, %s, 1" % (sSPIN, sSPIN),
                      "\ts_cmp_eq_u64 vcc, exec",
                      "\ts_cbranch_scc1 L_back%d" % n,
                      "\ts_cmp_lt_u32 %s, 0x8000" % sSPIN,
                      "\ts_cbranch_scc1 L_spin%d" % n,
                      "\ts_branch L_back%d" % n]
    def flag_store(self, so):
        if self.o.get("noflag"): return []
        return [so + ["s_mov_b64 exec, 1",
                      "buffer_store_dwordx2 v[%d:%d], off, %s, s3 sc1" % (vNO, vNO + 1, SWS),
                      "s_mov_b64 exec, -1"]]
    def get_nonce(self):
        e = self.e
        def issue():
            e("buffer_load_dwordx2 v[%d:%d], off, %s, 0 sc1" % (vNO, vNO + 1, SDBG))
        def check():
            self.nlab += 1; n = self.nlab
            e("v_readfirstlane_b32 s61, v%d" % (vNO + 1))
            e("v_readfirstlane_b32 s60, v%d" % vNO)
            e("s_cmp_eq_u32 s61, 0")
            e("s_cbranch_scc1 L_slow%d" % n)
            e.label("L_back%d" % n)
            self.slow += ["L_slow%d:" % n, "\ts_mov_b32 %s, 0" % sSPIN, "L_spin%d:" % n, "\ts_sleep 1",
                          "\tbuffer_load_dwordx2 v[%d:%d], off, %s, 0 sc1" % (vNO, vNO + 1, SDBG),
                          "\ts_waitcnt vmcnt(0)",
                          "\tv_readfirstlane_b32 s61, v%d" % (vNO + 1), "\tv_readfirstlane_b32 s60, v%d" % vNO,
                          "\ts_add_u32 %s, %s, 1" % (sSPIN, sSPIN), "\ts_nop 4",
                          "\ts_cmp_lg_u32 s61, 0", "\ts_cbranch_scc1 L_back%d" % n,
                          "\ts_cmp_lt_u32 %s, 0x8000" % sSPIN, "\ts_cbranch_scc1 L_spin%d" % n,
                          "\ts_branch L_back%d" % n]
        issue.vm = True
        return issue, check
    def prologue(self):
        e = self.e; o = self.o
        e("s_cmp_ge_u32 s2, 256")
        e("s_cbranch_scc1 L_exit")
        if o.get("stamps"):
            e.raw("\ts_memrealtime s[98:99]")
            e.raw("\ts_memtime %s" % sTM)
            self.pend_stamp = 0
        e("s_load_dwordx16 s[64:79], s[0:1], 0")
        e("s_load_dwordx4 s[80:83], s[0:1], 64")
        e("s_load_dwordx2 s[84:85], s[0:1], 80")
        e.raw("\ts_getpc_b64 %s" % sPC)
        e.label("L_pc")
        e("s_lshr_b32 %s, s2, 3" % st3)
        e("s_and_b32 %s, %s, 3" % (st0, st3))
        e("s_lshl_b32 %s, %s, 15" % (st0, st0))
        e("v_lshlrev_b32 v2, 7, v0")
        e("v_add_u32 v2, %s, v2" % st0)
        e("v_lshrrev_b32 v3, 6, v0")
        e("v_min_u32 v2, L_end-L_pc-4, v2")
        e("v_readfirstlane_b32 %s, v3" % sWAVE)
        if not o.get("notouch"):
            e("global_load_dword v195, v2, %s" % sPC)
        e("v_and_b32 v0, 63, v0")
        e("s_and_b32 %s, s2, 7" % st2)
        e("s_lshr_b32 %s, %s, 2" % (sRB, st2))
        e("s_lshl_b32 %s, %s, 3" % (sRB, sRB))
        e("s_and_b32 %s, %s, 7" % (st0, st3))
        e("s_add_u32 %s, %s, %s" % (sRB, sRB, st0))
        e("s_lshr_b32 %s, %s, 3" % (st1, st3))
        e("s_lshr_b32 %s, %s, 1" % (sTYPE, st1))
        e("s_and_b32 %s, %s, 3" % (sIJ, st2))
        e("s_lshl_b32 %s, %s, 1" % (sIJ, sIJ))
        e("s_and_b32 %s, %s, 1" % (sROT, st1))
        e("s_add_u32 %s, %s, %s" % (sIJ, sIJ, sROT))
        rmode = o.get("rot", 8)
        if rmode == 8:
            e("s_lshl_b32 %s, %s, 1" % (sROT, st1))
            e("s_add_u32 %s, %s, %s" % (sROT, sROT, st0))
            e("s_and_b32 %s, %s, 7" % (sROT, sROT))
        elif rmode == 0:
            e("s_mov_b32 %s, 0" % sROT)
        elif rmode == 1:
            e("s_lshl_b32 %s, %s, 1" % (sROT, st2))
            e("s_lshr_b32 %s, %s, 2" % (st0, st2))
            e("s_add_u32 %s, %s, %s" % (sROT, sROT, st0))
            e("s_and_b32 %s, %s, 7" % (sROT, sROT))
        elif rmode == 2:
            e("s_add_u32 %s, %s, %s" % (sROT, st0, st1))
            e("s_and_b32 %s, %s, 1" % (sROT, sROT))
            e("s_lshl_b32 %s, %s, 2" % (sROT, sROT))
            e("s_add_u32 %s, %s, %s" % (sROT, sROT, st2))
            e("s_and_b32 %s, %s, 7" % (sROT, sROT))
        elif rmode == 4:
            e("s_add_u32 %s, %s, %s" % (sROT, st0, st1))
            e("s_and_b32 %s, %s, 3" % (sROT, sROT))
            e("s_lshl_b32 %s, %s, 1" % (sROT, sROT))
            e("s_and_b32 %s, %s, 1" % (st0, st2))
            e("s_add_u32 %s, %s, %s" % (sROT, sROT, st0))
        e("s_movk_i32 %s, 3072" % sSTRIDE)
        e("s_cmp_eq_u32 %s, 0" % sTYPE)
        e("s_cselect_b32 %s, %s, 3584" % (sSTRIDE, sSTRIDE))
        e("v_lshrrev_b32 v32, 3, v0")
        e("v_and_b32 v33, 7, v0")
        e("v_lshrrev_b32 v34, 4, v0")
        e("v_xor_b32 v35, v33, v34")
        e("v_lshlrev_b32 v35, 4, v35")
        e("v_lshl_add_u32 %s, v32, 10, v35" % vOX(0))
        e("v_xor_b32 v36, 64, %s" % vOX(0))
        e("v_add_u32 %s, 7168, v36" % vOX(1))
        e("v_add_u32 %s, 14336, %s" % (vOX(2), vOX(0)))
        e("v_add_u32 %s, 21504, v36" % vOX(3))
        e("v_and_b32 v35, 16, v0")
        e("v_lshrrev_b32 v35, 2, v35")
        e("v_xor_b32 v35, v33, v35")
        e("v_lshlrev_b32 v35, 4, v35")
        e("v_mul_lo_u32 v36, v32, %s" % sSTRIDE)
        e("v_add_u32 %s, v36, v35" % vOW(0))
        e("s_lshl_b32 %s, %s, 3" % (st0, sSTRIDE))
        e("s_sub_u32 %s, %s, 1024" % (st0, st0))
        for q in range(1, 4):
            e("v_add_u32 %s, %s, %s" % (vOW(q), st0, vOW(q - 1)))
        e("s_lshl_b32 %s, %s, 2" % (sHST, sRB))
        e("s_add_u32 %s, %s, %s" % (sHST, sHST, sWAVE))
        e("s_lshl_b32 %s, %s, 15" % (sXB, sHST))
        e("s_lshl_b32 %s, %s, 6" % (sS64, sSTRIDE))
        e("s_lshl_b32 %s, %s, 14" % (sM0X, sWAVE))
        e("s_add_u32 %s, %s, %d" % (sM0X, sM0X, XW))
        e("s_lshl_b32 %s, %s, 12" % (sM0WA, sWAVE))
        e("s_lshr_b32 %s, %s, 1" % (st0, sWAVE))
        e("s_lshr_b32 %s, %s, 1" % (st1, sIJ))
        e("s_mul_i32 %s, %s, 7" % (sWH, st1))
        e("s_and_b32 %s, %s, 1" % (sWB, sIJ))
        e("s_lshl2_add_u32 %s, %s, %s" % (st1, sWB, sWH))
        e("s_lshl_b32 %s, %s, 7" % (st4, st1))
        e("s_lshl_b32 %s, %s, 7" % (st2, st0))
        e("s_add_u32 %s, %s, %s" % (sWA, st4, st2))
        e("s_lshl_b32 %s, %s, 7" % (sFL, sIJ))
        e("s_lshl_b32 %s, %s, 10" % (st2, st0))
        e("s_add_u32 %s, %s, %s" % (st2, st2, sFL))
        e("s_add_u32 %s, %s, 1024" % (st2, st2))
        e("s_cmp_eq_u32 %s, 0" % sTYPE)
        e("s_cselect_b32 %s, %s, %s" % (sWA, st2, sWA))
        e("s_and_b32 %s, %s, 1" % (st0, sWAVE))
        e("s_lshl_b32 %s, %s, 5" % (st0, st0))
        e("s_mul_i32 %s, %s, %s" % (st0, st0, sSTRIDE))
        e("s_add_u32 %s, %s, %s" % (sWA, sWA, st0))
        e.smem_wait()
        if o.get("stamps"):
            e("s_mov_b32 %s, s98" % sT0)
        def srd(base, lo, hi, nbytes):
            e("s_mov_b32 s%d, s%d" % (base, lo))
            e("s_and_b32 s%d, s%d, 0xffff" % (base + 1, hi))
            e("s_mov_b32 s%d, %d" % (base + 2, nbytes))
            e("s_mov_b32 s%d, 0x20000" % (base + 3))
        srd(4, 64, 65, 2097152)
        e("s_cmp_eq_u32 %s, 0" % sTYPE)
        e("s_cselect_b32 s8, s66, s72")
        e("s_cselect_b32 s9, s67, s73")
        e("s_mov_b32 s10, 1572864")
        e("s_cselect_b32 s10, s10, 1835008")
        e("s_and_b32 s9, s9, 0xffff")
        e("s_mov_b32 s11, 0x20000")
        self.vm_now(self.dma_a(0, 0))
        self.stamp(1)
        srd(36, 82, 83, 256)
        e("s_or_b32 %s, s2, %s" % (st0, sWAVE))
        e("s_cmp_lg_u32 %s, 0" % st0)
        e("s_cbranch_scc1 L_nonce_done")
        e.raw("\ts_memrealtime %s" % sNONCE)
        e.smem_wait()
        e("s_or_b32 s61, s61, 0x80000000")
        e("v_mov_b32 v%d, s60" % vNO)
        e("v_mov_b32 v%d, s61" % (vNO + 1))
        e("s_mov_b64 exec, 1")
        e.raw("\tbuffer_store_dwordx2 v[%d:%d], off, %s, 0 sc1" % (vNO, vNO + 1, SDBG))
        e("s_mov_b64 exec, -1")
        e.label("L_nonce_done")
        self.vm_now(self.dma_a(1, 0))
        if o.get("wsoff"):
            e("s_add_u32 s84, s84, %d" % (o["wsoff"] << 20))
            e("s_addc_u32 s85, s85, 0")
        srd(20, 84, 85, WS_BYTES if (not o.get("stamps") or o.get("dbgout") or o.get("enc") is not None) else STAMP + 256 * 1024)
        srd(12, 76, 77, 1835008)
        srd(16, 68, 69, 524288)
        srd(24, 80, 81, 2097152)
        srd(28, 74, 75, 3584)
        srd(32, 78, 79, 1024)
        tl = o.get("tlb", 0)
        if tl:
            e("v_lshlrev_b32 v194, %d, v0" % tl)
            e("s_lshl_b32 %s, %s, %d" % (st0, sWAVE, tl + 6))
            e("buffer_load_dword v193, v194, %s, %s offen" % (SWS, st0))
            e("v_lshlrev_b32 v194, 15, v0")
            e("buffer_load_dword v192, v194, %s, 0 offen" % SOUT)
            e("buffer_load_dword v191, v194, %s, 0 offen" % SW2)
            e("buffer_load_dword v190, v194, %s, 0 offen" % SWO)
            e("buffer_load_dword v189, off, %s, 0" % SB2)
        e("s_mov_b32 %s, %s" % (sR, sHST))
        e("s_mul_i32 %s, %s, %d" % (sHST, sHST, 144 * 1024))
        e("s_lshl_b32 %s, %s, 11" % (sM0WB, sWAVE))
        e("s_lshl_b32 %s, %s, 10" % (sM0WH, sWAVE))
        e("s_lshl_b32 %s, %s, 2" % (st0, sWH))
        e("s_lshl1_add_u32 %s, %s, %s" % (st1, sWB, st0))
        e("s_add_u32 %s, %s, 12" % (st1, st1))
        e("s_lshl_b32 %s, %s, 10" % (st1, st1))
        e("s_add_u32 %s, %s, %s" % (sHB2, st1, sHST))
        e("s_lshl4_add_u32 %s, %s, %s" % (st1, sWB, st0))
        e("s_lshl_b32 %s, %s, 10" % (st1, st1))
        e("s_add_u32 %s, %s, %s" % (sHA0, st1, sHST))
        e("s_add_u32 %s, %s, 4096" % (sHA1, sHA0))
        e("s_add_u32 %s, %s, 8192" % (sHB1, sHA0))
        e("s_add_u32 %s, %s, 3" % (sWH, sWH))
        e("s_lshl_b32 %s, %s, 7" % (sWH, sWH))
        e("s_lshl_b32 %s, %s, 6" % (sWB, sWB))
        e("s_add_u32 %s, %s, %s" % (sFL2, sWH, sWB))
        e("s_add_u32 %s, %s, 256" % (sWB, st4))
        e("s_cmp_eq_u32 %s, 0" % sTYPE)
        e("s_cselect_b32 %s, %s, %s" % (sWB, sFL, sWB))
        e("s_lshl_b32 %s, %s, 4" % (st0, sWAVE))
        e("s_mul_i32 %s, %s, %s" % (st0, st0, sSTRIDE))
        e("s_add_u32 %s, %s, %s" % (sWB, sWB, st0))
        e("s_add_u32 %s, %s, %s" % (sWH, sFL2, st0))
        e("s_lshl2_add_u32 %s, %s, %s" % (sHEAD, sIJ, sWAVE))
        e("s_and_b32 %s, s2, 7" % st2)
        e("s_lshr_b32 %s, s2, 3" % st3)
        if o.get("p2", "4x8") == "4x8":
            e("s_and_b32 %s, %s, 3" % (st0, st3))
            e("s_lshl2_add_u32 %s, %s, %s" % (sRT, st2, st0))
            e("s_lshr_b32 %s, %s, 2" % (sCC, st3))
        else:
            e("s_lshr_b32 %s, %s, 1" % (sRT, st2))
            e("s_and_b32 %s, %s, 7" % (st0, st3))
            e("s_lshl3_add_u32 %s, %s, %s" % (sRT, sRT, st0))
            e("s_and_b32 %s, %s, 1" % (sCC, st2))
            e("s_lshr_b32 %s, %s, 3" % (st0, st3))
            e("s_lshl2_add_u32 %s, %s, %s" % (sCC, sCC, st0))
        e("s_lshl_b32 %s, %s, 7" % (sBB, sCC))
        e("s_mul_i32 %s, %s, %d" % (sW2B, sWAVE, 448 * 1024))
        e("s_add_u32 %s, %s, %s" % (sW2B, sW2B, sBB))
        e("s_lshl_b32 %s, %s, 17" % (sWOB, sWAVE))
        e("s_add_u32 %s, %s, %s" % (sWOB, sWOB, sBB))
        e("s_lshl2_add_u32 %s, %s, %s" % (st0, st3, sWAVE))
        e("s_lshr_b32 %s, %s, 6" % (st1, st0))
        e("s_bfe_u32 %s, %s, 0x20004" % (st2, st0))
        e("s_mul_i32 %s, %s, 14" % (st2, st2))
        e("s_add_u32 %s, %s, %s" % (st1, st1, st2))
        e("s_and_b32 %s, %s, 15" % (st0, st0))
        e("s_lshl4_add_u32 %s, %s, %s" % (st0, st1, st0))
        e("s_lshl_b32 %s, %s, 11" % (sPSRC, st0))
        e("s_mul_i32 %s, %s, %d" % (sAB, sRT, 288 * 1024))
        e("s_mul_i32 %s, %s, %d" % (sAW, sWAVE, 28 * 1024))
        e("s_add_u32 %s, %s, %s" % (sAW, sAW, sAB))
        e("s_lshl_b32 %s, %s, 13" % (sAO, sWAVE))
        e("s_add_u32 %s, %s, %s" % (sAO, sAO, sAB))
        e("s_add_u32 %s, %s, %d" % (sAO, sAO, 112 * 1024))
        e("v_lshlrev_b32 %s, 4, v0" % vL16)
        e("v_lshl_add_u32 %s, v32, 10, v35" % vOB(0))
        for q in range(1, 4):
            e("v_add_u32 %s, 7168, %s" % (vOB(q), vOB(q - 1)))
        e("v_and_b32 v32, 3, v0")
        e("v_bfe_u32 v33, v0, 2, 2")
        e("v_bfe_u32 v34, v0, 4, 1")
        e("v_lshrrev_b32 v35, 5, v0")
        e("v_lshl_add_u32 v36, v35, 3, v33")
        e("v_and_b32 v37, 2, v33")
        e("v_xor_b32 v37, v37, v34")
        e("v_lshlrev_b32 v37, 5, v37")
        e("v_lshl_add_u32 v37, v32, 3, v37")
        e("v_lshl_add_u32 v38, v36, 7, v37")
        e("v_lshlrev_b32 v39, 5, v34")
        e("v_lshl_add_u32 v39, v32, 3, v39")
        e("v_lshl_add_u32 v39, v36, 6, v39")
        e("v_and_b32 v40, 31, v0")
        e("v_bfe_u32 v41, v0, 1, 3")
        e("v_xor_b32 v42, v41, v35")
        e("v_lshlrev_b32 v42, 4, v42")
        e("v_lshl_add_u32 v42, v40, 7, v42")
        e("v_add_u32 v42, %s, v42" % sM0X)
        for s in range(4):
            e("s_add_u32 %s, %s, %d" % (st0, sWAVE, s))
            e("s_and_b32 %s, %s, 3" % (st0, st0))
            e("s_lshl_b32 %s, %s, 11" % (st1, st0))
            e("v_add_u32 %s, %s, v38" % (vTW(s, 0), st1))
            e("v_xor_b32 %s, 64, %s" % (vTW(s, 1), vTW(s, 0)))
            e("s_lshl_b32 %s, %s, 10" % (st1, st0))
            e("v_add_u32 %s, %s, v39" % (vTH(s), st1))
            e("s_lshl_b32 %s, %s, 5" % (st1, st0))
            e("v_xor_b32 %s, %s, v42" % (vXR(s), st1))
        e("v_lshrrev_b32 v43, 4, v0")
        e("v_xor_b32 v43, v43, v41")
        e("v_lshlrev_b32 v43, 4, v43")
        e("v_and_b32 v44, 15, v0")
        e("v_lshl_add_u32 v43, v44, 7, v43")
        e("v_add_u32 %s, %s, v43" % (vSR[0], sM0X))
        e("v_xor_b32 %s, 64, %s" % (vSR[1], vSR[0]))
        e("v_bfe_u32 v43, v0, 2, 1")
        e("v_cmp_eq_u32 vcc, v43, v34")
        e("v_mov_b32 v44, 0x3f803f80")
        for j in range(4): e("v_cndmask_b32 v%d, 0, v44, vcc" % (SEL + j))
        e("v_lshl_add_u32 v36, v35, 2, v33")
        e("v_lshl_add_u32 v36, v36, 7, v37")
        e("v_add_u32 %s, %s, v36" % (vTB[0], sM0X))
        e("v_xor_b32 %s, 64, %s" % (vTB[1], vTB[0]))
        e("v_add_u32 %s, %d, %s" % (vA2, 144 * 1024, vL16))
        e("v_lshrrev_b32 v36, 2, v0")
        e("v_mul_u32_u24 v36, 3584, v36")
        e("v_lshl_add_u32 %s, v32, 4, v36" % vOH)
        e("v_and_b32 v36, 2, v0")
        e("v_lshlrev_b32 v36, 9, v36")
        e("v_and_b32 v37, 1, v0")
        e("v_lshl_add_u32 %s, v37, 7, v36" % vPO)
        e("s_mov_b32 s64, 0xffff0000")
        e("s_mov_b32 s65, 0xffff0000")
        e("s_mov_b32 %s, 0x3f803f80" % sONES)
        e("s_mov_b32 %s, 0x358637bd" % sEPS6)
        e("s_mov_b32 %s, 0x3fb8aa3b" % sLOG2E)
        e("s_mov_b32 s86, -1")
        e("s_mov_b32 s87, 0")
        e("s_cmp_eq_u32 %s, 0" % sTYPE)
        e("s_cbranch_scc0 L_typeB")
    def dma_a(self, c, at):
        slot = c & 3
        pre = ["s_add_u32 %s, %s, %d" % (st0, sROT, c), "s_and_b32 %s, %s, 7" % (st0, st0),
               "s_mul_i32 %s, %s, %s" % (st1, st0, sS64), "s_lshl_b32 %s, %s, 7" % (st0, st0),
               "s_add_u32 m0, %s, %d" % (sM0X, slot * 4096),
               "s_add_u32 %s, %s, %s" % (st2, st0, sXB), "s_add_u32 %s, %s, %s" % (st3, st1, sWA)]
        out = []
        for q in range(4):
            out.append((at, pre if q == 0 else [], "buffer_load_dwordx4 %s, %s, %s offen offset:%d lds" % (vOX(q), SX, st2, q * 1024), []))
        for q in range(4):
            out.append((at, ["s_add_u32 m0, %s, %d" % (sM0WA, slot * 16384)] if q == 0 else [],
                        "buffer_load_dwordx4 %s, %s, %s offen offset:%d lds" % (vOW(q), SW, st3, q * 1024),
                        [("mark", "chunk", c)] if q == 3 else []))
        return out
    def dma_b1(self, c, at):
        pre = ["s_add_u32 %s, %s, %d" % (st0, sROT, c & 7), "s_and_b32 %s, %s, 7" % (st0, st0),
               "s_mul_i32 %s, %s, %s" % (st1, st0, sS64), "s_add_u32 m0, %s, %d" % (sM0WB, (c - 8) * 8192),
               "s_add_u32 %s, %s, %s" % (st1, st1, sWB)]
        return [(at, pre, "buffer_load_dwordx4 %s, %s, %s offen lds" % (vOW(0), SW, st1), []),
                (at, [], "buffer_load_dwordx4 %s, %s, %s offen offset:1024 lds" % (vOW(1), SW, st1), [("mark", "chunk", c)])]
    def dma_b2(self, j, at):
        pre = ["s_add_u32 %s, %s, %d" % (st0, sROT, j), "s_and_b32 %s, %s, 7" % (st0, st0),
               "s_mul_i32 %s, %s, %s" % (st1, st0, sS64), "s_add_u32 m0, %s, %d" % (sM0WH, j * 4096),
               "s_add_u32 %s, %s, %s" % (st1, st1, sWH)]
        return [(at, pre, "buffer_load_dwordx4 %s, %s, %s offen lds" % (vOH, SW, st1), [("mark", "chunk", 16 + j)])]
    def piece_dma(self, t, at):
        if t < 14: base, off, srd = sW2B, KORD[2 * t] * 16384, SW2
        else: base, off, srd = sWOB, (t - 14) * 32768, SWO
        pre = ([("waitlg", "ptr", t - 4)] if t >= 4 else []) + ["s_add_u32 m0, %s, %d" % (sM0X, (t & 3) * 4096), "s_add_u32 %s, %s, %d" % (st2, base, off)]
        return [(at, pre if q == 0 else [], "buffer_load_dwordx4 %s, %s, %s offen offset:%d lds" % (vOB(q), srd, st2, q * 1024),
                 [("mark", "pdma", t)] if q == 3 else []) for q in range(4)]
    def vm_now(self, entries):
        for at, pre, ins, post in entries:
            self.run(pre); self.run(ins); self.run(post)
    def touch_global(self, at):
        pre = ["s_lshl2_add_u32 %s, s2, %s" % (st0, sWAVE), "s_mul_i32 %s, %s, %d" % (st1, st0, 14 * 128), "s_lshl_b32 %s, %s, 9" % (st0, st0),
               "v_lshlrev_b32 v198, 7, v0", "v_min_u32 v199, %d, v198" % (13 * 128), "v_min_u32 v198, %d, v198" % (3 * 128)]
        return [(at, pre, "buffer_load_dword v199, v199, %s, %s offen" % (SW2, st1), []),
                (at, [], "buffer_load_dword v198, v198, %s, %s offen" % (SWO, st0), [])]
    def touch_l2(self, r, at):
        kp = KORD[4 * r] // 2
        assert KORD[4 * r + 2] // 2 == kp + 1
        pre = ["s_add_u32 %s, %s, %d" % (st0, sPSRC, kp * 32768)]
        if r == 0: pre += ["v_and_b32 v197, 15, v0", "v_lshlrev_b32 v197, 7, v197"]
        return [(at, pre, ["s_mov_b64 exec, 0xffff", "buffer_load_dword v196, v197, %s, %s offen" % (SW2, st0), "s_mov_b64 exec, -1"], [])]
    def pslot(self, t):
        k = t & 15
        return 128 + 16 * k if k < 8 else 16 * (k - 8)
    def piece_tr(self, t):
        it = [("waitvm", "pdma", t)]
        b = self.pslot(t)
        for u in range(2):
            for cb in range(2):
                for tt in range(2):
                    it.append("ds_read_b64_tr_b16 %s, %s offset:%d" % (ar(b + 8 * u + 4 * cb + 2 * tt, 2), vTB[cb], (t & 3) * 4096 + u * 2048 + tt * 1024))
        it.append(("mark", "ptr", t))
        return it
    def g_reads(self, n):
        buf = BFR + 16 * (n & 1)
        it = []
        if n < 32:
            c, s = n >> 2, n & 3
            slot = c & 3
            it.append("ds_read_b128 %s, %s offset:%d" % (ar(4 * n), vXR(s), slot * 4096))
            for i in range(4):
                for t in range(2):
                    it.append("ds_read_b64_tr_b16 %s, %s offset:%d" % (vr(buf + 4 * i + 2 * t, 2), vTW(s, i & 1), slot * 16384 + (i >> 1) * 8192 + t * 512))
            it.append("ds_read_b128 %s, %s offset:%d" % (vr(SF + 4 * (n & 1)), vSR[s >> 1], slot * 4096 + (s & 1) * 2048))
        elif n < 64:
            c, s = n >> 2, n & 3
            for i in range(2):
                for t in range(2):
                    it.append("ds_read_b64_tr_b16 %s, %s offset:%d" % (vr(buf + 4 * i + 2 * t, 2), vTW(s, i), (c - 8) * 8192 + t * 512))
        else:
            for i in range(2):
                k = 2 * (n - 64) + i
                for t in range(2):
                    it.append("ds_read_b64_tr_b16 %s, %s offset:%d" % (vr(buf + 4 * i + 2 * t, 2), vTH(k & 3), (k >> 2) * 4096 + t * 256))
        it.append(("mark", "frag", n))
        return it
    def g_mfmas(self, n, typ):
        buf = BFR + 16 * (n & 1)
        out = []
        if n < 32:
            for i in range(4):
                d = vr(ACCA + 16 * i, 16); w = vr(buf + 4 * i); x = ar(4 * n)
                a, b = (x, w) if typ == "A" else (w, x)
                out.append("%s %s, %s, %s, %s" % (MF, d, a, b, "0" if n == 0 else d))
        elif n < 64:
            for i in range(2):
                d = vr(ACCB + 16 * i, 16)
                out.append("%s %s, %s, %s, %s" % (MF, d, vr(buf + 4 * i), ar(4 * (n - 32)), "0" if n == 32 else d))
        else:
            for i in range(2):
                k = 2 * (n - 64) + i
                d = vr(ACCB + 32, 16)
                out.append("%s %s, %s, %s, %s" % (MF, d, vr(buf + 4 * i), ar(4 * k), "0" if k == 0 else d))
        return out
    def g_small(self, n):
        it = []
        buf = BFR + 16 * (n & 1)
        if n < 32:
            it.append("%s %s, %s, %s, %s" % (MS, vr(SUMA), vr(SEL), ar(4 * n), "0" if n == 0 else vr(SUMA)))
            g = GRAM + 4 * (n & 1); f = vr(SF + 4 * (n & 1))
            it.append("%s %s, %s, %s, %s" % (MS, vr(g), f, f, "0" if n < 2 else vr(g)))
            if (n & 3) == 0:
                for i in range(4):
                    it.append("%s %s, %s, %s, %s" % (MS, vr(CSAACC + 4 * i), vr(SEL), vr(buf + 4 * i), "0" if n == 0 else vr(CSAACC + 4 * i)))
        elif n < 64:
            if (n & 3) == 0:
                for i in range(2):
                    it.append("%s %s, %s, %s, %s" % (MS, vr(CSBACC + 4 * i), vr(SEL), vr(buf + 4 * i), "0" if n == 32 else vr(CSBACC + 4 * i)))
        elif (n & 1) == 0:
            it.append("%s %s, %s, %s, %s" % (MS, vr(CSBACC + 8), vr(SEL), vr(buf), "0" if n == 64 else vr(CSBACC + 8)))
        return it
    def has_vm(self, items):
        for x in items:
            if isinstance(x, str) and x.startswith("buffer_"): return True
            if isinstance(x, list) and self.has_vm(x): return True
            if callable(x) and getattr(x, "vm", False): return True
        return False
    def gap(self, n, rd, extra, sm, nvm):
        picks = []
        while len(picks) < nvm and self.vq and self.vq[0][0] <= n:
            picks.append(self.vq.pop(0))
            if picks[-1][1] and len(picks) > 1:
                self.vq.insert(0, picks.pop()); break
        if picks: self.run(picks[0][1])
        self.run(rd)
        parts = len(picks) + 1
        cuts = spread(len(extra), parts)
        pos = 0
        for k in range(parts):
            self.run(extra[pos:pos + cuts[k]]); pos += cuts[k]
            if k == 0: self.run(sm)
            if k < len(picks):
                self.run(picks[k][2]); self.run(picks[k][3])
    def gemm1(self, typ, nsteps, front, queue, rate, bars, vrate):
        e = self.e
        e.wait(vm=self.marks[("chunk", 0)][0])
        e.barrier()
        self.stamp(2)
        self.run(self.g_reads(0))
        q = []
        for n in range(nsteps):
            mf = self.g_mfmas(n, typ)
            sm = self.g_small(n)
            rd = self.g_reads(n + 1) if n + 1 < nsteps else []
            q += queue.get(n, [])
            r = rate(n)
            extra = list(front.get(n, [])) + q[:r]; q = q[r:]
            k = len(mf)
            per = spread(len(extra), k); pers = spread(len(sm), k)
            perr = spread(len(rd), k - 1) + [0]
            vr_ = vrate(n)
            pos = ps = pr = 0
            self.run(("waitlg", "frag", n))
            if (n & 3) == 0 and n: self.stamp(2 + (n >> 2))
            if self.o.get("stamps") == 4 and 0 <= n - self.o.get("g0", 66) < 14: self.stamp(35 + n - self.o.get("g0", 66), force=True)
            for i in range(k):
                self.run(mf[i])
                if i == 0 and n in bars:
                    pre, post = bars[n]
                    self.run(pre)
                    e.barrier()
                    q = list(post) + q
                ex = extra[pos:pos + per[i]]
                nv = vr_[i] - (1 if self.has_vm(ex) else 0)
                self.gap(n, rd[pr:pr + perr[i]], ex, sm[ps:ps + pers[i]], max(nv, 0))
                pos += per[i]; ps += pers[i]; pr += perr[i]
        self.stamp(2 + (nsteps >> 2))
        print("gemm1 end: vq", len(self.vq), "q", len(q)) if self.o.get("verbose") else None
        return q
    def stats_final(self, typ):
        g0, g1 = GRAM, GRAM + 4
        t0, t1, t2 = "v221", "v222", "v223"
        it = []
        for m, a, b in ((0x22222222, 0, 1), (0x88888888, 2, 3), (0xcccccccc, 0, 2)):
            it.append(["s_mov_b32 s84, 0x%x" % m, "s_mov_b32 s85, 0x%x" % m] +
                      ["v_cndmask_b32 v%d, v%d, v%d, %s" % (g + a, g + a, g + b, sM1) for g in (g0, g1)])
        it += ["s_lshl_b32 %s, %s, 8" % (sq0, sWAVE), "s_add_u32 %s, %s, %d" % (sq0, sq0, RS),
               "v_and_b32 %s, 15, v0" % t0, "v_lshl_add_u32 %s, %s, 2, %s" % (t0, t0, sq0),
               "v_and_b32 %s, 31, v0" % vA0, "v_lshl_add_u32 %s, %s, 2, %s" % (vA0, vA0, sq0),
               ["s_mov_b32 s84, 0x00f0000f", "s_mov_b32 s85, 0xf0000f00", "s_mov_b64 exec, %s" % sM1,
                "ds_write_b32 %s, v%d" % (t0, g0), "ds_write_b32 %s, v%d offset:64" % (t0, g1), "s_mov_b64 exec, -1"],
               "ds_read_b32 %s, %s" % (t1, vA0),
               "v_mul_f32 %s, 0x3b000000, v%d" % (t0, SUMA),
               "v_mov_b32 v%d, 0" % (VQ + 2), "v_mov_b32 v%d, 0" % (VQ + 3),
               "v_mov_b32 v%d, 0" % (UQ0 + 2), "v_mov_b32 v%d, 0" % (UQ0 + 3),
               "v_mul_f32 %s, 0x3b000000, %s" % (t1, t1),
               "v_fma_f32 %s, -%s, %s, %s" % (t1, t0, t0, t1),
               "v_max_f32 %s, 0, %s" % (t1, t1),
               "v_cvt_pk_bf16_f32 %s, -%s, %s" % (t2, t0, t1),
               "v_and_b32 %s, 0xffff0000, %s" % (t1, t2),
               "v_lshlrev_b32 %s, 16, %s" % (t0, t2),
               "v_add_f32 %s, 0x3727c5ac, %s" % (t1, t1),
               "v_cvt_pk_bf16_f32 %s, %s, %s" % (t1, t1, t1),
               "v_lshlrev_b32 %s, 16, %s" % (t1, t1),
               "v_sqrt_f32 %s, %s" % (t1, t1),
               "v_cvt_pk_bf16_f32 v%d, %s, %s" % (VQ, t0, t0),
               "v_cvt_pk_bf16_f32 v%d, %s, %s" % (VQ + 1, t1, t0),
               "v_cndmask_b32 v%d, 0, v%d, %s" % (VQ, VQ, sLO),
               "v_lshlrev_b32 %s, 16, v%d" % (t1, VQ + 1),
               "v_cndmask_b32 v%d, 0, v%d, %s" % (VQ + 1, VQ + 1, sLO),
               "v_rcp_f32 %s, %s" % (vRI, t1)]
        return it
    def cs_write(self, k, acc, ncb):
        it = ["s_lshl_b32 s3, %s, 10" % sWAVE, "s_add_u32 s3, s3, %d" % CSX[k], "v_add_u32 %s, s3, %s" % (vT, vL16)]
        for i in range(1, ncb): it.append("v_mov_b32 v%d, v%d" % (acc + i, acc + 4 * i))
        it += ["ds_write_b128 %s, %s" % (vT, vr(acc)), ("mark", "csw", k)]
        return it
    def cs_final(self, k, ncb, tmp):
        it = ["v_add_u32 %s, %d, %s" % (vT, CSX[k], vL16)]
        for w in range(4):
            it.append("ds_read_b128 %s, %s offset:%d" % (vr(tmp + 4 * w), vT, w * 1024))
        for i in range(ncb):
            it.append("v_add_f32 v%d, v%d, v%d" % (tmp + i, tmp + i, tmp + 4 + i))
            it.append("v_add_f32 v%d, v%d, v%d" % (tmp + 8 + i, tmp + 8 + i, tmp + 12 + i))
        for i in range(ncb):
            it.append("v_add_f32 v%d, v%d, v%d" % (CS + i, tmp + i, tmp + 8 + i))
        return it
    def fold(self, acc, ci, uq, b, normal=False):
        c = "v%d" % (CS + ci); t0, t1 = vA1, vA2t
        it = ["v_cvt_pk_bf16_f32 %s, %s, %s" % (t0, c, c), "v_lshlrev_b32 %s, 16, %s" % (t0, t0), "v_sub_f32 %s, %s, %s" % (t0, c, t0),
              "v_cvt_pk_bf16_f32 v%d, %s, %s" % (uq, c, t0), "v_and_b32 %s, 0xffff0000, v%d" % (t1, uq), "v_sub_f32 %s, %s, %s" % (t0, t0, t1)]
        if b is not None:
            it += ["v_lshlrev_b32 v%d, 16, v%d" % (b, b), "v_cvt_pk_bf16_f32 v%d, v%d, %s" % (uq + 1, b, t0)]
        else:
            it += ["v_cvt_pk_bf16_f32 v%d, 0, %s" % (uq + 1, t0)]
        d = vr(acc, 16)
        a_, b_ = (vr(VQ), vr(uq)) if normal else (vr(uq), vr(VQ))
        it.append("%s %s, %s, %s, %s" % (MF, d, a_, b_, d))
        return it
    def h_epi(self, accs, cb0, kst, uqs, Ps, tmp):
        it = []
        n = len(accs)
        it += self.fold(accs[0], 0, uqs[0], B1V + cb0)
        for ci in range(n):
            a = accs[ci]; P = Ps[ci % len(Ps)]
            if ci + 1 < n: it += self.fold(accs[ci + 1], ci + 1, uqs[(ci + 1) % len(uqs)], B1V + cb0 + ci + 1)
            for g in range(4):
                for j in range(4): it.append("v_max_f32 v%d, 0, v%d" % (a + 4 * g + j, a + 4 * g + j))
                for j in range(4): it.append("v_mul_f32 v%d, v%d, v%d" % (a + 4 * g + j, a + 4 * g + j, a + 4 * g + j))
                for j in range(2): it.append("v_cvt_pk_bf16_f32 v%d, v%d, v%d" % (P + 2 * g + j, a + 4 * g + 2 * j, a + 4 * g + 2 * j + 1))
                if g & 1:
                    so, imm = kst(cb0 + ci)
                    it.append("buffer_store_dwordx4 %s, %s, %s, %s offen offset:%d sc1" % (vr(P + 4 * (g >> 1)), vL16, SWS, so, imm + (g >> 1) * 1024))
        return it
    def phi4(self, a, ri, tt):
        it = []
        for j in range(4): it.append("v_fma_f32 v%d, v%d, %s, %s" % (a + j, a + j, ri(j), sEPS6))
        for j in range(4): it.append("v_mul_f32 %s, %s, v%d" % (tt[j], sLOG2E, a + j))
        for j in range(4):
            it.append("v_exp_f32_e64 %s, %s clamp" % (tt[j], tt[j]))
            it.append("v_max_f32 v%d, %s, v%d" % (a + j, sEPS6, a + j))
        for j in range(4): it.append("v_add_f32 v%d, v%d, %s" % (a + j, a + j, tt[j]))
        return it
    def a_seq(self):
        seq = []
        sp = self.o.get("split", 8)
        for n in range(28 - sp): seq += [(1, n, 0), (1, n, 1)]
        for rbk in range(2): seq += [(1, n, rbk) for n in range(28 - sp, 28)]
        for rbk in range(2): seq += [(0, k, rbk) for k in range(8)]
        return seq
    def a_load(self, i, at):
        ffn, n, rbk = self.a_seq()[i]
        k, base = (KORD[n], sAW) if ffn else (n, sAO)
        pre = []
        seq = self.a_seq()
        first = lambda st: min(x for x in range(72) if (seq[x][0] and seq[x][1] >= st))
        if i in (first(16), first(24), 56): pre.append(self.poll_check)
        if (base, k >> 2) != self.a_grp:
            pre.append("s_add_u32 %s, %s, %d" % (sFL2, base, (k >> 2) * 4096))
            self.a_grp = (base, k >> 2)
        return (at, pre, "buffer_load_dwordx4 %s, %s, %s, %s offen offset:%d sc1" % (vr(AR + 4 * (i & 15)), vA2 if rbk else vL16, SWS, sFL2, (k & 3) * 1024), [("mark", "ald", i)])
    a_grp = None
    def p2_mfmas(self, n):
        out = []
        seq = self.a_seq()
        for i in (2 * n, 2 * n + 1):
            ffn, m, rbk = seq[i]
            t = (m >> 1) if ffn else 14 + (m >> 1)
            pb = self.pslot(t) + 8 * (m & 1)
            for cbk in range(2):
                d = vr((ACCO if ffn else ACCS) + 32 * rbk + 16 * cbk, 16)
                out.append("%s %s, %s, %s, %s" % (MF, d, ar(pb + 4 * cbk), vr(AR + 4 * (i & 15)), "0" if m == 0 else d))
        return out
    def poll_fh(self, stage):
        return self.poll_issue(vPO, ["s_mul_i32 %s, %s, 24" % (sFL, sRT), "s_add_u32 %s, %s, %s" % (sFL, sWAVE, sFL), "s_lshl_b32 %s, %s, 8" % (sFL, sFL),
                                     "s_add_u32 %s, %s, %d" % (sFL, sFL, FH + stage * 2048)])
    def poll_fo(self):
        return self.poll_issue(vPO, ["s_lshl3_add_u32 %s, %s, %s" % (sFL, sRT, sWAVE), "s_lshl_b32 %s, %s, 8" % (sFL, sFL),
                                     "s_add_u32 %s, %s, %d" % (sFL, sFL, FO)])
    def ex_addr(self):
        it = ["v_and_b32 v8, 31, v0", "v_lshrrev_b32 v9, 5, v0", "v_and_b32 v14, 7, v0",
              "v_xor_b32 v9, v9, v14", "v_lshlrev_b32 v9, 4, v9", "v_lshl_add_u32 v9, v8, 8, v9",
              "s_lshl_b32 %s, %s, 14" % (sq0, sWAVE), "v_add_u32 v2, %s, v9" % sq0]
        for g in range(1, 4): it.append("v_xor_b32 v%d, %d, v2" % (2 + g, g * 32))
        it += ["v_lshrrev_b32 v8, 3, v0", "v_lshlrev_b32 v9, 1, v14", "v_xor_b32 v9, v9, v8", "v_lshlrev_b32 v9, 4, v9",
               "v_lshl_add_u32 v9, v8, 8, v9", "s_lshl_b32 %s, %s, 11" % (sq0, sWAVE), "v_add_u32 v6, %s, v9" % sq0,
               "v_xor_b32 v7, 16, v6", "v_add_u32 v28, %d, v6" % XW, "v_add_u32 v29, %d, v7" % XW,
               "v_add_u32 v30, %d, v2" % XW,
               "v_lshlrev_b32 v9, 4, v14", "v_lshl_add_u32 v15, v8, 10, v9", "v_lshlrev_b32 v8, 2, v8",
               "s_lshl3_add_u32 %s, %s, %s" % (sq0, sRT, sWAVE), "s_lshl_b32 %s, %s, 13" % (sq1, sq0),
               "s_add_u32 %s, %s, %s" % (sOUT0, sq1, sBB), "s_add_u32 %s, %s, 32768" % (sOUT1, sOUT0),
               "s_lshl_b32 %s, %s, 5" % (sq0, sq0), "s_lshl_b32 %s, %s, 14" % (sq1, sWAVE), "s_add_u32 %s, %s, %s" % (sq0, sq0, sq1), "s_add_u32 %s, %s, %d" % (sq0, sq0, RV),
               "buffer_load_dwordx4 v[16:19], v15, %s, %s offen" % (SX, sOUT0),
               "buffer_load_dwordx4 v[20:23], v15, %s, %s offen" % (SX, sOUT1),
               "buffer_load_dwordx4 v[24:27], v9, %s, %s offen" % (SB2, sBB),
               "buffer_load_dword v246, v8, %s, %s offen sc1" % (SWS, sq0),
               "buffer_load_dword v247, v8, %s, %s offen offset:128 sc1" % (SWS, sq0),
               "v_xor_b32 v8, 32, v30", "v_xor_b32 v9, 64, v30", "v_xor_b32 v14, 96, v30"]
        return it
    def ex_write(self, acc, regs, rbks):
        it = []
        for rbk in rbks:
            for cbk in range(2):
                for g in range(4):
                    it.append("ds_write_b128 %s, %s offset:%d" % (regs[g], vr(acc + 32 * rbk + 16 * cbk + 4 * g), rbk * 8192 + cbk * 128))
        return it
    def silu_items(self, q):
        O = ACCO + 32 * q
        it = []
        for b in range(2):
            for w in range(4):
                it.append("ds_read_b128 %s, v%d offset:%d" % (vr(O + 16 * b + 4 * w), 6 + b, w * 16384 + q * 8192))
        if q == 0:
            for j in range(4):
                it.append("v_lshlrev_b32 v%d, 16, v%d" % (10 + j, 24 + j))
                it.append("v_and_b32 v%d, 0xffff0000, v%d" % (24 + j, 24 + j))
            it.append("s_mov_b32 %s, 0xbfb8aa3b" % sq2)
        for b in range(2):
            o0 = O + 16 * b; G = 224 + 8 * q + 4 * b
            b2 = lambda j: (10 if (j & 1) == 0 else 24) + 2 * b + (j >> 1)
            for j in range(4): it.append("v_add_f32 v%d, v%d, v%d" % (o0 + j, o0 + j, o0 + 4 + j))
            for j in range(4): it.append("v_add_f32 v%d, v%d, v%d" % (o0 + 8 + j, o0 + 8 + j, o0 + 12 + j))
            for j in range(4): it.append("v_add_f32 v%d, v%d, v%d" % (o0 + j, o0 + j, o0 + 8 + j))
            for j in range(4): it.append("v_fma_f32 v%d, v%d, v%d, v%d" % (o0 + j, o0 + j, 246 + q, b2(j)))
            for j in range(4): it.append("v_mul_f32 v%d, %s, v%d" % (o0 + 4 + j, sq2, o0 + j))
            for j in range(4): it.append("v_exp_f32 v%d, v%d" % (o0 + 4 + j, o0 + 4 + j))
            for j in range(4): it.append("v_add_f32 v%d, 1.0, v%d" % (o0 + 4 + j, o0 + 4 + j))
            for j in range(4): it.append("v_rcp_f32 v%d, v%d" % (o0 + 4 + j, o0 + 4 + j))
            for j in range(4): it.append("v_mul_f32 v%d, v%d, v%d" % (G + j, o0 + j, o0 + 4 + j))
        return it
    def fin_items(self, q):
        S = ACCO + 32 * q; X = (32 if q == 0 else 48)
        it = []
        for b in range(2):
            for w in range(4):
                it.append("ds_read_b128 %s, v%d offset:%d" % (vr(S + 16 * b + 4 * w), 28 + b, w * 16384 + q * 8192))
        for j in range(4):
            it.append("v_lshlrev_b32 v%d, 16, v%d" % (X + 2 * j, 16 + 4 * q + j))
            it.append("v_and_b32 v%d, 0xffff0000, v%d" % (X + 1 + 2 * j, 16 + 4 * q + j))
        for b in range(2):
            s0 = S + 16 * b
            for j in (0, 2): it.append("v_pk_add_f32 %s, %s, %s" % (vr(s0 + j, 2), vr(s0 + j, 2), vr(s0 + 4 + j, 2)))
            for j in (0, 2): it.append("v_pk_add_f32 %s, %s, %s" % (vr(s0 + 8 + j, 2), vr(s0 + 8 + j, 2), vr(s0 + 12 + j, 2)))
            for j in (0, 2): it.append("v_pk_add_f32 %s, %s, %s" % (vr(s0 + j, 2), vr(s0 + j, 2), vr(s0 + 8 + j, 2)))
            for j in (0, 2): it.append("v_pk_fma_f32 %s, %s, %s, %s" % (vr(X + 4 * b + j, 2), vr(s0 + j, 2), vr(224 + 8 * q + 4 * b + j, 2), vr(X + 4 * b + j, 2)))
        for j in range(4): it.append("v_cvt_pk_bf16_f32 v%d, v%d, v%d" % (X + 8 + j, X + 2 * j, X + 1 + 2 * j))
        it.append("buffer_store_dwordx4 %s, v15, %s, %s offen %s" % (vr(X + 8), SOUT, sOUT0 if q == 0 else sOUT1, self.o.get("outfl", "").replace("+", " ")))
        return it
    def p2(self, nd, nt, na, hooks, rate, pollat):
        e = self.e
        D = self.o.get("p2d", 14)
        q = []
        self.vq = [(0,) + x[1:] for x in self.vq]
        trat = {}; nt0 = nt; lag0 = self.o.get("lag0", 3); nextd = self.o.get("p2d0", 2)
        gapd = (self.o.get("p2dl", 18) - nextd) // max(1, 17 - nd)
        bar = lambda: (e.wait(lg=e.lg_seq), e.barrier())
        wo = ["v2", "v3", "v4", "v5"]; wsr = ["v30", "v8", "v9", "v14"]
        sp = self.o.get("split", 8)
        n0 = 28 - sp // 2
        hooks.setdefault(n0, []).extend(self.ex_write(ACCO, wo, [0]) + [bar] + self.silu_items(0))
        hooks.setdefault(28, []).extend(self.ex_write(ACCO, wo, [1]) + [bar] + self.silu_items(1))
        hooks.setdefault(32, []).extend(self.ex_write(ACCS, wsr, [0]))
        for n in range(36):
            extra = []
            if nt < 18 and ("pdma", nt) in self.marks and (nt < 16 or n >= 2 * (nt - 16) + 2) and n >= trat.get(nt, lag0 + 2 * (nt - nt0)):
                extra += self.piece_tr(nt); nt += 1
            while na < 72 and na < 2 * n + D:
                self.vq.append(self.a_load(na, n)); na += 1
            if nd < 18 and nd - nt < 4 and n >= nextd:
                self.vq += self.piece_dma(nd, n); trat[nd] = n + self.o.get("p2lag", 7); nd += 1; nextd = n + gapd
            if n in pollat: extra.append(pollat[n])
            if n in [self.o.get("pr1", 7), self.o.get("pr2", 13), self.o.get("pr3", 19)] and self.o.get("dpoll", 1): extra.append(self.poll_again())
            q += hooks.get(n, [])
            r = rate(n)
            extra += q[:r]; q = q[r:]
            mf = self.p2_mfmas(n)
            per = spread(len(extra), 4)
            pos = 0
            if self.o.get("stamps") == 4 and 0 <= n - self.o.get("p0", 0) < 13: self.stamp(49 + n - self.o.get("p0", 0), force=True)
            seq = self.a_seq()
            print("p2 step", n, "vq", len(self.vq)) if self.o.get("verbose") else None
            for i in range(4):
                ai = 2 * n + (i >> 1)
                while ("ald", ai) not in self.marks or False:
                    self.vm_now([self.vq.pop(0)])
                assert ("ptr", (seq[ai][1] >> 1) + (0 if seq[ai][0] else 14)) in self.marks, (n, nt)
                self.run(mf[i])
                ex = extra[pos:pos + per[i]]
                self.gap(n, [], ex, [], (0 if self.has_vm(ex) else 1) + (1 if len(self.vq) > 5 else 0))
                pos += per[i]
            if (n & 3) == 3: self.stamp(24 + (n >> 2))
        assert not self.vq and nt == 18
        self.run(q)
        bar()
        w1 = self.ex_write(ACCS, wsr, [1]); f0 = self.fin_items(0)
        self.run(f0[:8])
        f0 = f0[8:]
        for k in range(8):
            self.run(w1[k]); self.run(f0[:4]); f0 = f0[4:]
        self.run(f0)
        bar()
        self.stamp(33)
        self.run(self.fin_items(1))
        self.stamp(34, last=True)
        e("s_endpgm")
    def base_front(self, typ):
        o = self.o
        f = {}
        def add(n, g): f.setdefault(n, []).append(g)
        ent = []
        for c in range(2, 8): ent.append(((c - 2) * 3.2, self.dma_a(c, max(0, 4 * (c - 4) + 3))))
        if o.get("tg", 1) >= 0: ent.append((o.get("tg", 1), self.touch_global(o.get("tg", 1))))
        for r in range(o.get("ntl", 4)):
            at = o.get("tl0", 7) + r * o.get("tlp", 5)
            ent.append((at, self.touch_l2(r, at)))
        for c in range(8, 16):
            at = 19 + 4 * ((c - 8) >> 1)
            ent.append((at + 0.5, self.dma_b1(c, at)))
        self.ent = ent
        nissue, ncheck = self.get_nonce()
        add(o.get("nis", 10), nissue); add(o.get("nck", 18), ncheck)
        add(30, self.cs_write(0, CSAACC, 4))
        return f, add
    def pieces(self, add, sched):
        for t, (d, r) in enumerate(sched):
            self.ent.append((d + 0.7, self.piece_dma(t, d)))
            if r is not None:
                for x in self.piece_tr(t): add(r, x)
    def close_vq(self):
        self.ent.sort(key=lambda x: x[0])
        self.vq = []
        for a, x in self.ent: self.vq += x
    def vrate(self, n):
        if n < 32: return [0, 1, 1, 1] if (n & 1) else [0, 1, 1, 0]
        return [1, 1]
    def base_bars(self):
        bars = {}
        for c in range(7): bars[4 * c + 3] = ([("waitvm", "chunk", c + 1)], [])
        bars[31] = ([("waitvm", "chunk", 9), ("waitlg", "csw", 0)], [])
        for c in (9, 11, 13): bars[4 * c + 3] = ([("waitvm", "chunk", c + 2)], [])
        return bars
    def path_B(self):
        e = self.e; o = self.o
        e.label("L_typeB")
        self.cur = "B"
        e("v_and_b32 %s, 31, v0" % vT)
        e("v_lshlrev_b32 %s, 1, %s" % (vT, vT))
        for cb in range(6): e("buffer_load_ushort v%d, %s, %s, %s offen offset:%d" % (B1V + cb, vT, SB1, st4, cb * 64))
        e("buffer_load_ushort v%d, %s, %s, %s offen" % (B1V + 6, vT, SB1, sFL2))
        front, add = self.base_front("B")
        bars = self.base_bars()
        def kst(cb):
            if cb < 2: return sHA0, cb * 2048
            if cb < 4: return sHA1, (cb - 2) * 2048
            if cb < 6: return sHB1, (cb - 4) * 2048
            return sHB2, 0
        def flag_h(stage):
            return [("waitvm", "hst", stage)] + self.flag_store(
                ["s_lshr_b32 s3, %s, 1" % sR, "s_mul_i32 s3, s3, 48", "s_add_u32 s3, %s, s3" % sIJ,
                 "s_and_b32 %s, %s, 1" % (sq3, sR), "s_lshl3_add_u32 s3, %s, s3" % sq3, "s_lshl_b32 s3, s3, 7",
                 "s_add_u32 s3, s3, %d" % (FH + stage * 2048)])
        UQ1 = 192
        rv = ["v_mul_f32 %s, %s, %s" % (vA1, vRI, vRI), "v_and_b32 %s, 31, v0" % vA2t, "v_lshlrev_b32 %s, 2, %s" % (vA2t, vA2t),
              "s_lshl_b32 %s, %s, 6" % (sq0, sIJ), "s_add_u32 %s, %s, %s" % (sq0, sq0, sR), "s_lshl_b32 %s, %s, 7" % (sq0, sq0), "s_add_u32 %s, %s, %d" % (sq0, sq0, RV),
              ["s_mov_b64 exec, %s" % sLO, "buffer_store_dword %s, %s, %s, %s offen sc1" % (vA1, vA2t, SWS, sq0), "s_mov_b64 exec, -1"]]
        queue = {}
        queue[32] = (self.stats_final("B") + self.cs_final(0, 4, 196) + ["v_mov_b32 v%d, 0" % (UQ1 + 2), "v_mov_b32 v%d, 0" % (UQ1 + 3)] + rv
                     + self.h_epi([ACCA + 16 * i for i in range(4)], 0, kst, [UQ0, UQ1], [196, 204], None) + [("mark", "hst", 0)])
        fa = o.get("fha", 58)
        add(fa, flag_h(0))
        add(62, self.cs_write(1, CSBACC, 2))
        bars[63] = ([("waitvm", "chunk", 23), ("waitlg", "csw", 1)], [])
        queue[64] = self.cs_final(1, 2, 196) + self.h_epi([ACCB, ACCB + 16], 4, kst, [UQ0, UQ1], [196, 204], None) + [("mark", "hst", 1)]
        add(79, self.cs_write(2, CSBACC + 8, 1))
        fb1 = o.get("fhb1", 82)
        if fb1 < 80: add(fb1, flag_h(1))
        for j in range(8): self.ent.append((40 if j < 4 else 48, self.dma_b2(j, 40 if j < 4 else 48)))
        self.pieces(add, eval(o.get("schb", "[(20,35),(24,36),(28,37),(34,48),(36,49),(37,50),(39,51),(49,60),(50,66),(52,68),(54,70),(61,72),(67,None)]")))
        add(o.get("pa", 62), self.poll_fh(0))
        na = 14
        first = True
        for k in range(na):
            x = self.a_load(k, o.get("pac", 69))
            if first: x = (x[0], [self.poll_check] + x[1], x[2], x[3]); first = False
            self.ent.append((x[0] + 0.01 * k, [x]))
        self.close_vq()
        rate = lambda n: 0 if n < 32 else (o.get("rb1", 12) if n < 64 else o.get("rb2", 12))
        rest = self.gemm1("B", 80, front, queue, rate, bars, self.vrate)
        self.run(rest)
        e.wait(lg=e.lg_seq)
        e.barrier()
        self.stamp(23)
        hooks = {}
        hooks[0] = (self.cs_final(2, 1, 144) + self.h_epi([ACCB + 32], 6, kst, [UQ0], [144], None) + [("mark", "hst", 2)])
        if fb1 >= 80: hooks.setdefault(fb1 - 80, []).extend(flag_h(1))
        hooks[o.get("fhb2", 6)] = flag_h(2)
        hooks.setdefault(9, []).extend(self.ex_addr())
        pollat = {o.get("pb1", 5): self.poll_fh(1), o.get("pb2", 11): self.poll_fh(2), o.get("po", 17): self.poll_fo()}
        self.p2(13, 12, na, hooks, lambda n: 28 if n < 3 else (12 if n < 24 else 24), pollat)
    def path_A(self):
        e = self.e; o = self.o
        front, add = self.base_front("A")
        bars = self.base_bars()
        RI, UQ1, PK, VV, ONES = 192, 208, 212, 240, 128
        tt = ["v132", "v133", "v134", "v135"]
        it = self.stats_final("A")
        it += ["v_lshrrev_b32 %s, 5, v0" % vA1, "v_lshl_add_u32 %s, %s, 4, %s" % (vA1, vA1, sq0),
               "ds_write_b32 %s, %s" % (vA0, vRI)]
        it += self.cs_final(0, 4, 192)
        for g in range(4): it.append("ds_read_b128 %s, %s offset:%d" % (vr(RI + 4 * g), vA1, g * 32))
        it += ["v_mov_b32 v%d, 0" % (UQ1 + 2), "v_mov_b32 v%d, 0" % (UQ1 + 3)]
        it += self.fold(ACCA, 0, UQ0, None, True) + self.fold(ACCA + 32, 2, UQ1, None, True)
        it += ["s_lshl_b32 %s, %s, 12" % (sq0, sWAVE), "s_add_u32 %s, %s, %d" % (sq0, sq0, KVX), "v_add_u32 v136, %s, %s" % (sq0, vL16),
               "s_lshl_b32 %s, %s, 8" % (sq0, sWAVE), "s_add_u32 %s, %s, %d" % (sq0, sq0, ZX),
               "v_lshrrev_b32 v137, 5, v0", "v_lshl_add_u32 v137, v137, 4, %s" % sq0]
        for j in range(4): it.append("v_mov_b32 v%d, %s" % (ONES + j, sONES))
        it += self.fold(ACCA + 16, 1, UQ0, None, True) + self.fold(ACCA + 48, 3, UQ1, None, True)
        posts = []
        for p in range(2):
            ak = ACCA + 16 * p; av = ACCA + 32 + 16 * p
            for g in range(4):
                it += self.phi4(ak + 4 * g, lambda j: "v%d" % (RI + 4 * g + j), tt)
                for j in range(4): it.append("v_mul_f32 v%d, v%d, v%d" % (av + 4 * g + j, av + 4 * g + j, RI + 4 * g + j))
                for j in range(2): it.append("v_cvt_pk_bf16_f32 v%d, v%d, v%d" % (PK + 2 * g + j, ak + 4 * g + 2 * j, ak + 4 * g + 2 * j + 1))
                for j in range(2): it.append("v_cvt_pk_bf16_f32 v%d, v%d, v%d" % (VV + 2 * g + j, av + 4 * g + 2 * j, av + 4 * g + 2 * j + 1))
                if p == 1 and g == 0: it += posts[0]
            it.append("%s %s, %s, %s, 0" % (MF, vr(ak, 16), vr(PK), vr(VV)))
            it.append("%s %s, %s, %s, 0" % (MF, vr(av, 16), vr(PK), vr(ONES)))
            it.append("%s %s, %s, %s, %s" % (MF, vr(ak, 16), vr(PK + 4), vr(VV + 4), vr(ak, 16)))
            it.append("%s %s, %s, %s, %s" % (MF, vr(av, 16), vr(PK + 4), vr(ONES), vr(av, 16)))
            post = []
            for i in range(8): post.append("v_cndmask_b32 v%d, v%d, v%d, %s" % (ak + i, ak + i, ak + 8 + i, sMASK))
            for part in range(2): post.append("ds_write_b128 v136, %s offset:%d" % (vr(ak + 4 * part), p * 2048 + part * 1024))
            post.append(["s_mov_b32 s84, 1", "s_mov_b32 s85, 1", "s_mov_b64 exec, %s" % sM1] +
                        ["ds_write_b128 v137, %s offset:%d" % (vr(av + 4 * g), (2 * p + (g >> 1)) * 64 + (g & 1) * 32) for g in range(4)] +
                        ["s_mov_b64 exec, -1"])
            posts.append(post)
        it += ["v_and_b32 v138, 15, v0", "v_bfe_u32 v139, v0, 4, 1", "v_lshl_add_u32 v138, v139, 5, v138",
               "s_and_b32 %s, %s, 1" % (sq0, sWAVE), "s_lshl_b32 %s, %s, 4" % (sq0, sq0), "v_add_u32 v138, %s, v138" % sq0,
               "v_lshlrev_b32 v138, 4, v138", "v_lshrrev_b32 v139, 5, v0", "v_lshl_add_u32 v138, v139, 10, v138",
               "s_lshr_b32 %s, %s, 1" % (sq0, sWAVE), "s_lshl_b32 %s, %s, 11" % (sq0, sq0), "s_add_u32 %s, %s, %d" % (sq0, sq0, KVX),
               "v_add_u32 v138, %s, v138" % sq0,
               "v_and_b32 v140, 48, v0", "s_lshl_b32 %s, %s, 6" % (sq0, sWAVE), "s_add_u32 %s, %s, %d" % (sq0, sq0, ZX),
               "v_add_u32 v139, %s, v140" % sq0]
        it += posts[1] + [("mark", "kvw", 0)]
        queue = {32: it}
        KB = o.get("kvbar", 11)
        T = 192
        red = []
        for w in range(4): red.append("ds_read_b128 %s, v138 offset:%d" % (vr(T + 4 * w), w * 4096))
        for w in range(4): red.append("ds_read_b128 %s, v139 offset:%d" % (vr(T + 16 + 4 * w), w * 256))
        red += ["s_lshl4_add_u32 %s, %s, %s" % (sq0, sHEAD, sRB),
                "s_lshl_b32 %s, %s, 10" % (sq1, sq0), "s_add_u32 %s, %s, %d" % (sq1, sq1, KVP),
                "s_lshl_b32 %s, %s, 7" % (sq2, sq0), "s_add_u32 %s, %s, %d" % (sq2, sq2, ZP)]
        for b in (T, T + 16):
            for j in range(4): red.append("v_add_f32 v%d, v%d, v%d" % (b + j, b + j, b + 4 + j))
            for j in range(4): red.append("v_add_f32 v%d, v%d, v%d" % (b + 8 + j, b + 8 + j, b + 12 + j))
            for j in range(4): red.append("v_add_f32 v%d, v%d, v%d" % (b + j, b + j, b + 8 + j))
        red.append("buffer_store_dwordx4 %s, %s, %s, %s offen sc1" % (vr(T), vL16, SWS, sq1))
        red.append(["s_mov_b32 s84, 0x00010001", "s_mov_b32 s85, 0x00010001", "s_mov_b64 exec, %s" % sM1,
                    "buffer_store_dwordx4 %s, v140, %s, %s offen sc1" % (vr(T + 16), SWS, sq2), "s_mov_b64 exec, -1"])
        red.append(("mark", "kvst", 0))
        KS = o.get("kvs", 35)
        bars[KS] = (bars.get(KS, ([], []))[0] + [("waitlg", "kvw", 0)], red)
        flag_kv = [("waitvm", "kvst", 0)] + self.flag_store(["s_lshl4_add_u32 s3, %s, %s" % (sHEAD, sRB), "s_lshl_b32 s3, s3, 7", "s_add_u32 s3, s3, %d" % FKV])
        add(o.get("fkv", 57), flag_kv)
        add(62, self.cs_write(1, CSBACC, 2))
        bars[63] = ([lambda: e.wait(lg=e.lg_seq)], [])
        self.pieces(add, eval(o.get("scha", "[(20,37),(24,38),(28,39),(33,40),(38,48),(39,49),(40,50),(42,51),(49,58),(50,59),(52,60),(53,61),(59,None),(60,None),(62,None)]")))
        self.close_vq()
        ra = -(-len(it) // (KS - 32))
        rate = lambda n: 0 if n < 32 else ra
        rest = self.gemm1("A", 64, front, queue, rate, bars, self.vrate)
        self.run(rest)
        self.stamp(19)
        Q = [160 + 4 * i for i in range(16)] + [240]
        poll_kv = [["v_and_b32 v244, 15, v0", "v_lshlrev_b32 v244, 7, v244",
                    self.poll_issue("v244", ["s_lshl_b32 %s, %s, 11" % (sFL, sHEAD), "s_add_u32 %s, %s, %d" % (sFL, sFL, FKV)])]]
        kv1 = [self.poll_check,
               "s_lshl_b32 %s, %s, 14" % (sq0, sHEAD), "s_add_u32 %s, %s, %d" % (sq0, sq0, KVP),
               "s_lshl_b32 %s, %s, 11" % (sq1, sHEAD), "s_add_u32 %s, %s, %d" % (sq1, sq1, ZP),
               "v_and_b32 v244, 15, v0", "v_lshlrev_b32 v244, 7, v244", "v_and_b32 v245, 48, v0", "v_add_u32 v244, v244, v245",
               "buffer_load_dwordx4 %s, v244, %s, %s offen sc1" % (vr(Q[16]), SWS, sq1)]
        for r in range(16):
            if r and r % 4 == 0: kv1.append("s_add_u32 %s, %s, 4096" % (sq0, sq0))
            kv1.append("buffer_load_dwordx4 %s, %s, %s, %s offen offset:%d sc1" % (vr(Q[r]), vL16, SWS, sq0, (r & 3) * 1024))
        kv2 = []
        z = Q[16]
        for sh in (8, 4, 2, 1):
            for j in range(4): kv2.append("v_add_f32_dpp v%d, v%d, v%d row_ror:%d row_mask:0xf bank_mask:0xf" % (z + j, z + j, z + j, sh))
        kv2 += ["v_and_b32 v244, 15, v0", "v_bfe_u32 v245, v0, 4, 1", "v_lshl_add_u32 v244, v245, 5, v244", "v_lshlrev_b32 v244, 4, v244",
                "v_lshrrev_b32 v245, 5, v0", "v_lshl_add_u32 v244, v245, 3, v244",
                "s_lshl_b32 %s, %s, 10" % (sq0, sWAVE), "s_add_u32 %s, %s, %d" % (sq0, sq0, KVF), "v_add_u32 v244, %s, v244" % sq0,
                "v_cvt_pk_bf16_f32 v%d, v%d, v%d" % (z, z, z + 1), "v_cvt_pk_bf16_f32 v%d, v%d, v%d" % (z + 1, z + 2, z + 3),
                "ds_write_b64 v244, %s offset:256" % vr(z, 2)]
        stepw = 1
        while stepw < 16:
            for r in range(0, 16, 2 * stepw):
                for j in range(4): kv2.append("v_add_f32 v%d, v%d, v%d" % (Q[r] + j, Q[r] + j, Q[r + stepw] + j))
            stepw *= 2
        kv2 += ["v_cvt_pk_bf16_f32 v%d, v%d, v%d" % (Q[0], Q[0], Q[0] + 1), "v_cvt_pk_bf16_f32 v%d, v%d, v%d" % (Q[0] + 1, Q[0] + 2, Q[0] + 3),
                "ds_write_b64 v244, %s" % vr(Q[0], 2),
                "v_add_u32 v244, %d, %s" % (KVF, vL16),
                lambda: (e.wait(lg=e.lg_seq), e.barrier())]
        for hh in range(4): kv2.append("ds_read_b128 %s, v244 offset:%d" % (vr(144 + 4 * hh), hh * 1024))
        kv2 += ["s_lshl_b32 %s, %s, 12" % (sq0, sIJ), "s_add_u32 %s, %s, %d" % (sq0, sq0, 112 * 1024), "s_add_u32 %s, %s, %s" % (sq0, sq0, sHST)]
        for hp in range(2):
            for k2 in range(2):
                hh = 2 * hp + k2
                kv2.append("%s %s, %s, %s, 0" % (MF, vr(96 + 16 * k2, 16), vr(144 + 4 * hh), vr(PQ + 4 * hh)))
            for k2 in range(2):
                hh = 2 * hp + k2
                a = 96 + 16 * k2
                kv2.append("v_add_f32 v%d, %s, v%d" % (a + 8, sEPS6, a + 8))
                kv2.append("v_rcp_f32 v%d, v%d" % (a + 8, a + 8))
                for j in range(8): kv2.append("v_mul_f32 v%d, v%d, v%d" % (a + j, a + j, a + 8))
                for j in range(4): kv2.append("v_cvt_pk_bf16_f32 v%d, v%d, v%d" % (224 + 4 * hh + j, a + 2 * j, a + 2 * j + 1))
                kv2.append("buffer_store_dwordx4 %s, %s, %s, %s offen offset:%d sc1" % (vr(224 + 4 * hh), vL16, SWS, sq0, hh * 1024))
        kv2.append(("mark", "ost", 0))
        flag_o = [("waitvm", "ost", 0)] + self.flag_store(["s_lshl3_add_u32 s3, %s, %s" % (sR, sIJ), "s_lshl_b32 s3, s3, 7", "s_add_u32 s3, s3, %d" % FO])
        if o.get("tstamp"): self.stamp(35, force=True)
        self.vm_now(self.vq); self.vq = []
        self.run(poll_kv)
        UQ1 = 144; tt = ["v148", "v149", "v150", "v151"]
        items = self.cs_final(1, 2, 192) + ["v_mov_b32 v%d, 0" % (UQ1 + 2), "v_mov_b32 v%d, 0" % (UQ1 + 3)]
        items += self.fold(ACCB, 0, UQ0, None) + self.fold(ACCB + 16, 1, UQ1, None)
        for cb in range(2):
            a = ACCB + 16 * cb
            for g in range(4):
                items += self.phi4(a + 4 * g, lambda j: vRI, tt)
                for j in range(2): items.append("v_cvt_pk_bf16_f32 v%d, v%d, v%d" % (PQ + 8 * cb + 2 * g + j, a + 4 * g + 2 * j, a + 4 * g + 2 * j + 1))
        h = o.get("qsplit", 100)
        self.run(items[:h]); items = items[h:]
        if o.get("tstamp"): self.stamp(36, force=True)
        self.run(kv1[0]); kv1 = kv1[1:]
        if o.get("tstamp"): self.stamp(37, force=True)
        for x in kv1:
            self.run(x)
            if isinstance(x, str) and x.startswith("buffer"): self.run(items[:4]); items = items[4:]
        if o.get("tstamp"): self.stamp(38, force=True)
        self.poll_fh(0)()
        self.run(items)
        if o.get("tstamp"): self.stamp(39, force=True)
        nt = 12
        for t in range(12, 12 + o.get("atr", 2)): self.run(self.piece_tr(t)); nt += 1
        if o.get("tstamp"): self.stamp(40, force=True)
        h = o.get("k2split", 28)
        self.run(kv2[:h]); kv2 = kv2[h:]
        if o.get("tstamp"): self.stamp(41, force=True)
        self.poll_check()
        if o.get("tstamp"): self.stamp(42, force=True)
        na = 0
        for i in range(14):
            self.vm_now([self.a_load(na, 0)]); na += 1
            self.run(kv2[:4]); kv2 = kv2[4:]
        if o.get("tstamp"): self.stamp(43, force=True)
        kb = [i for i, x in enumerate(kv2) if callable(x)][0]
        self.run(kv2[:kb])
        if o.get("tstamp"): self.stamp(44, force=True)
        self.run(kv2[kb])
        if o.get("tstamp"): self.stamp(45, force=True)
        self.run(kv2[kb + 1:])
        if o.get("tstamp"): self.stamp(46, force=True)
        if o.get("tstamp"): self.stamp(47, force=True)
        if o.get("tstamp"): self.stamp(48, force=True)
        self.stamp(23)
        hooks = {}
        hooks[o.get("fo", 5)] = flag_o
        hooks[o.get("fo", 5) + 1] = self.ex_addr()
        pollat = {o.get("pb1a", 6): self.poll_fh(1), o.get("pb2", 11): self.poll_fh(2), o.get("po", 17): self.poll_fo()}
        self.p2(15, nt, na, hooks, lambda n: 12 if n < 24 else 24, pollat)
    def build(self):
        e = self.e
        self.prologue()
        snap = e.snapshot(); marks = dict(self.marks); ps = self.pend_stamp
        self.path_A()
        for s in self.slow: e.raw(s)
        self.slow = []
        e.restore(snap); self.marks = dict(marks); self.pend_stamp = ps; self.a_grp = None
        self.path_B()
        for s in self.slow: e.raw(s)
        e.label("L_exit")
        e.raw("\ts_endpgm")
        e.label("L_end")
        head = open("cdna_kernels/%s.s.ref" % NAME).read().split("; Override launch")[0]
        out = head
        out += "; @launch grid=(256,1,1) block=(256,1,1) lds=%d\n" % LDS_BYTES
        out += '.amdgcn_target "amdgcn-amd-amdhsa--gfx950"\n.text\n.globl %s_kernel\n.p2align 8\n.type %s_kernel,@function\n%s_kernel:\n' % (NAME, NAME, NAME)
        out += e.text()
        out += '.section .rodata,"a"\n.p2align 6\n.amdhsa_kernel %s_kernel\n' % NAME
        out += "  .amdhsa_next_free_vgpr 512\n  .amdhsa_next_free_sgpr 102\n  .amdhsa_accum_offset 256\n  .amdhsa_group_segment_fixed_size 0\n"
        out += "  .amdhsa_kernarg_size 88\n  .amdhsa_user_sgpr_count 2\n  .amdhsa_user_sgpr_kernarg_segment_ptr 1\n  .amdhsa_system_sgpr_workgroup_id_x 1\n.end_amdhsa_kernel\n"
        return out

if __name__ == "__main__":
    opt = {}
    out = "cdna_kernels/%s.s" % NAME
    for a in sys.argv[1:]:
        k, v = a.split("=")
        if k == "out": out = v
        else:
            try: v = int(v)
            except ValueError: pass
            opt[k] = v
    g = Gen(opt)
    s = g.build()
    open(out, "w").write(s)
    if opt.get("stamps") == 3:
        import json; json.dump(g.sites, open(out + ".sites", "w"))
    print("written", out, len(s.splitlines()), "lines", {k: v for k, v in sorted(g.e.count.items(), key=lambda x: -x[1])[:8]})
```

```python
import re

TRANS = ("v_exp_f32", "v_log_f32", "v_rcp_f32", "v_rsq_f32", "v_sqrt_f32", "v_sin_f32", "v_cos_f32")

def regs_of(tok):
    tok = tok.strip()
    if tok.startswith("-"): tok = tok[1:]
    m = re.match(r"^abs\((.*)\)$", tok)
    if m: tok = m.group(1)
    m = re.match(r"^([vas])(\d+)$", tok)
    if m: return [(m.group(1), int(m.group(2)))]
    m = re.match(r"^([vas])\[(\d+):(\d+)\]$", tok)
    if m: return [(m.group(1), i) for i in range(int(m.group(2)), int(m.group(3)) + 1)]
    if tok == "vcc": return [("s", 106), ("s", 107)]
    if tok == "vcc_lo": return [("s", 106)]
    if tok == "vcc_hi": return [("s", 107)]
    if tok == "exec": return [("s", 126), ("s", 127)]
    if tok == "exec_lo": return [("s", 126)]
    if tok == "exec_hi": return [("s", 127)]
    if tok == "m0": return [("s", 124)]
    return []

def split_ops(rest):
    parts = [p.strip() for p in rest.split(",")]
    ops = []
    mods = []
    for i, p in enumerate(parts):
        toks = p.split()
        if not toks: continue
        ops.append(toks[0])
        mods += toks[1:]
    return ops, mods

class Em:
    def __init__(self):
        self.lines = []
        self.clk = 0
        self.w = {}
        self.cread = {}
        self.sdata = {}
        self.vm_seq = 0; self.vm_done = 0
        self.lg_seq = 0; self.lg_done = 0
        self.pend = {}
        self.count = {}
        self.nbytes = 0
        self.vm_fin = {}
    def raw(self, text):
        self.lines.append(text)
    def comment(self, t):
        self.lines.append("; " + t)
    def label(self, name):
        self.lines.append(name + ":")
    def _out(self, text, states=1):
        self.lines.append("\t" + text)
        self.clk += states
        self.tick(text)
        op = text.split()[0]
        self.count[op] = self.count.get(op, 0) + 1
    t = 0; pipe = 0; vm_fin = {}; vm_last = 0; CAP = 9; slat = 800; next_lat = None; next_w = 1
    def vm_out(self):
        return sum(1 for k in range(max(1, self.vm_seq - 20), self.vm_seq + 1) if self.vm_fin.get(k, 0) > self.t)
    def tick(self, text):
        op = text.split()[0]
        c = 4
        if op.startswith("v_mfma"):
            self.t = max(self.t, self.pipe); self.pipe = self.t + (32 if "32x32" in op else 16); c = 8
        elif op.startswith("ds_write_b128"): c = 28
        elif op.startswith("ds_"): c = 8
        elif op in ("v_exp_f32", "v_exp_f32_e64", "v_rcp_f32", "v_sqrt_f32"): c = 8
        elif op == "s_nop": c = 4 * (int(text.split()[1]) + 1)
        elif op == "s_barrier": c = 30
        elif op.startswith("buffer_") or op.startswith("global_"):
            k = self.vm_seq + 1
            if self.vm_out() >= self.CAP: self.t = max(self.t, self.vm_fin.get(k - self.CAP, 0))
            lat = self.next_lat if self.next_lat else (self.slat if 'store' in op else 450)
            self.vm_last = max(self.t + lat, self.vm_last + 73 * self.next_w)
            self.vm_fin[k] = self.vm_last
            self.next_lat = None; self.next_w = 1
            c = 10
        elif op == "s_waitcnt":
            m = re.search(r"vmcnt\((\d+)\)", text)
            if m: self.t = max(self.t, self.vm_fin.get(self.vm_seq - int(m.group(1)), 0))
        self.t += int(c * 1.1)
    def nop(self, n):
        while n > 0:
            k = min(n, 16)
            self._out("s_nop %d" % (k - 1), k)
            n -= k
    def wait(self, vm=None, lg=None):
        parts = []
        if vm is not None and vm > self.vm_done:
            n = min(self.vm_seq - vm, 63)
            parts.append("vmcnt(%d)" % n)
            self.vm_done = max(self.vm_done, self.vm_seq - n)
            assert self.vm_done >= vm or self.vm_seq - vm > 63
            self.vm_done = max(self.vm_done, vm)
        if lg is not None and lg > self.lg_done:
            n = min(self.lg_seq - lg, 15)
            parts.append("lgkmcnt(%d)" % n)
            self.lg_done = max(self.lg_done, self.lg_seq - n, lg)
        if parts:
            self._out("s_waitcnt " + " ".join(parts))
    def wait_all(self):
        self.wait(vm=self.vm_seq, lg=self.lg_seq)
    def need(self, since, n):
        d = self.clk - since - 1
        return max(0, n - d)
    def __call__(self, text):
        text = text.strip()
        if "\n" in text:
            r = None
            for t in text.split("\n"):
                if t.strip(): r = self(t)
            return r
        sp = text.split(None, 1)
        op = sp[0]
        ops, mods = split_ops(sp[1]) if len(sp) > 1 else ([], [])
        R = []; W = []; kind = "salu"; A = B = C = D = None
        isdpp = any(m.startswith("row_") or m.startswith("quad_perm") for m in mods)
        if op.startswith("v_mfma"):
            kind = "mfma"
            D = regs_of(ops[0]); A = regs_of(ops[1]); B = regs_of(ops[2]); C = regs_of(ops[3])
            R = A + B + C; W = D
        elif op.startswith("ds_read"):
            kind = "ds"; W = regs_of(ops[0]); R = regs_of(ops[1])
        elif op.startswith("ds_"):
            kind = "ds"
            for o in ops: R += regs_of(o)
        elif op.startswith("buffer_load") or op.startswith("global_load"):
            kind = "vm"
            if "lds" in mods:
                for o in ops: R += regs_of(o)
                R += regs_of("m0")
            else:
                W = regs_of(ops[0])
                for o in ops[1:]: R += regs_of(o)
                if "d16" in op: R += W
        elif op.startswith("buffer_store") or op.startswith("global_store") or op.startswith("buffer_atomic"):
            kind = "vm"
            for o in ops: R += regs_of(o)
        elif op.startswith("v_"):
            kind = "valu"
            W = regs_of(ops[0])
            for o in ops[1:]: R += regs_of(o)
            if op.startswith("v_permlane"):
                W = W + regs_of(ops[1]); R = R + regs_of(ops[0])
            if op.startswith("v_dot2c") or op.startswith("v_fmac") or op.startswith("v_writelane"):
                R = R + W
            if op.startswith("v_cndmask") and len(ops) == 3:
                R += regs_of("vcc")
            if isdpp: R = R + W
        elif op in ("s_waitcnt",):
            raise Exception("use wait()")
        elif op in ("s_barrier", "s_nop", "s_sleep", "s_setprio", "s_endpgm", "s_branch") or op.startswith("s_cbranch"):
            kind = "ctl"
        elif op.startswith("s_cmp") or op.startswith("s_bitcmp"):
            for o in ops: R += regs_of(o)
        elif op.startswith("s_load") or op.startswith("s_memtime") or op.startswith("s_memrealtime"):
            kind = "smem"; W = regs_of(ops[0])
            for o in ops[1:]: R += regs_of(o)
        else:
            W = regs_of(ops[0])
            for o in ops[1:]: R += regs_of(o)
            if "saveexec" in op: W += regs_of("exec"); R += regs_of("exec")
        vmw = None; lgw = None
        for r in R + W:
            p = self.pend.get(r)
            if p:
                if p[0] == "vm": vmw = max(vmw or 0, p[1])
                else: lgw = max(lgw or 0, p[1])
        self.wait(vm=vmw, lg=lgw)
        for r in R + W:
            self.pend.pop(r, None)
        n = 0
        opbase = op.replace("_e32", "").replace("_e64", "").replace("_dpp", "")
        for r in set(R):
            lw = self.w.get(r)
            if not lw: continue
            k, c, info = lw
            if k == "mfma":
                big = len(info) == 16
                if kind == "mfma":
                    if r in A or r in B: n = max(n, self.need(c, 12 if big else 8))
                    if r in C:
                        if info != tuple(C): n = max(n, self.need(c, 10 if big else 6))
                else:
                    n = max(n, self.need(c, 12 if big else 8))
            elif k in ("valu", "trans", "dot"):
                if r[0] in "va":
                    if kind == "mfma": n = max(n, self.need(c, 2))
                    if op.startswith("v_permlane") or isdpp: n = max(n, self.need(c, 2))
                    if op.startswith("v_readfirstlane") or op.startswith("v_readlane"): n = max(n, self.need(c, 1))
                    if k == "trans" and kind == "valu" and opbase not in TRANS: n = max(n, self.need(c, 1))
                    if k == "trans" and kind != "valu": n = max(n, self.need(c, 1))
                    if k == "dot":
                        if not (opbase == info and r in W and r not in [x for o in ops[1:] for x in regs_of(o)]):
                            n = max(n, self.need(c, 3))
                else:
                    if kind == "valu": n = max(n, self.need(c, 2))
                    if kind == "vm": n = max(n, self.need(c, 5))
                    if kind == "salu": n = max(n, self.need(c, 1))
            elif k == "salu":
                if r == ("s", 124) and kind == "vm": n = max(n, self.need(c, 1))
        for r in set(W):
            lw = self.w.get(r)
            if lw:
                k, c, info = lw
                if k == "mfma" and kind != "mfma": n = max(n, self.need(c, 12 if len(info) == 16 else 8))
                if k == "mfma" and kind == "mfma" and info != tuple(D): n = max(n, self.need(c, 12 if len(info) == 16 else 8))
                if k == "dot" and not opbase == info: n = max(n, self.need(c, 3))
            if kind != "mfma" and r in self.cread: n = max(n, self.need(self.cread[r], 7))
            if r in self.sdata: n = max(n, self.need(self.sdata[r], 2))
        if n: self.nop(n)
        c = self.clk
        self._out(text)
        seq = None
        if kind == "vm":
            self.vm_seq += 1; seq = self.vm_seq
            for r in W: self.pend[r] = ("vm", seq)
            if op.startswith("buffer_store") or op.startswith("global_store"):
                d = regs_of(ops[0]) if op.startswith("buffer") else regs_of(ops[1])
                for r in d: self.sdata[r] = c
        elif kind == "ds":
            self.lg_seq += 1; seq = self.lg_seq
            for r in W: self.pend[r] = ("lg", seq)
            if op.startswith("ds_write"):
                for o in ops[1:]:
                    for r in regs_of(o): self.sdata[r] = c
        wk = kind
        info = None
        if kind == "valu":
            if opbase in TRANS: wk = "trans"
            elif opbase.startswith("v_dot"): wk = "dot"; info = opbase
        if kind == "mfma":
            info = tuple(D)
            for r in C: self.cread[r] = c
        for r in W:
            if kind in ("vm", "ds", "smem"): self.w.pop(r, None)
            else: self.w[r] = (wk, c, info)
        return seq
    def smem_wait(self):
        self._out("s_waitcnt lgkmcnt(0)")
        self.lg_done = self.lg_seq
    def barrier(self):
        self._out("s_barrier")
    def snapshot(self):
        import copy
        return copy.deepcopy((self.clk, self.w, self.cread, self.sdata, self.vm_seq, self.vm_done, self.lg_seq, self.lg_done, self.pend, self.t, self.pipe, self.vm_fin, self.vm_last))
    def restore(self, s):
        import copy
        (self.clk, self.w, self.cread, self.sdata, self.vm_seq, self.vm_done, self.lg_seq, self.lg_done, self.pend, self.t, self.pipe, self.vm_fin, self.vm_last) = copy.deepcopy(s)
    def text(self):
        return "\n".join(self.lines) + "\n"
```

```python
import sys
from em import Em

NAME = "recurrent_scan__linear_attn_block__dense_activation_squared_relu__prompt"

KVP = 0x900000
ZP = 0x980000
RV = 0x990000
EP = 0x998000
WS_BYTES = 0x998080
STAMP = 0x1000000
XW = 65536
MM = 131072
CSX = [MM, MM + 4096, MM + 8192]
KVX = MM + 12288
RS = MM + 28672
ZX = MM + 29696
KVF = MM
LDS_BYTES = 163840
SX, SW, SW2, SWO, SWS, SOUT, SB1, SB2, SDBG = "s[4:7]", "s[8:11]", "s[12:15]", "s[16:19]", "s[20:23]", "s[24:27]", "s[28:31]", "s[32:35]", "s[36:39]"
sWAVE, sRB, sIJ, sROT, sRT, sCC, sSTRIDE = "s40", "s41", "s42", "s43", "s44", "s45", "s46"
sXB, sWA, sWB, sWH, sS64, sM0X, sM0WA, sM0WB, sM0WH = "s47", "s48", "s49", "s50", "s51", "s52", "s53", "s54", "s55"
sRVO = "s47"; sKVB = "s48"; sZB = "s50"
st0, st1, st2, st3 = "s56", "s57", "s58", "s59"
sNONCE = "s[60:61]"
sHST = "s62"; sTYPE = "s63"; sMT = "s63"
sMASK = "s[64:65]"; sMH = "s66"; sH0 = "s46"; sE = "s67"; sBB = "s68"; sSPIN = "s69"
sW2B = "s70"; sWOB = "s71"; sAW = "s72"; sAO = "s73"; sR = "s74"; sHEAD = "s75"
sHA0, sHA1, sHB1, sHB2 = "s76", "s77", "s78", "s79"
sq0, sq1, sq2, sq3 = "s80", "s81", "s82", "s83"
sM1 = "s[84:85]"; sLO = "s[86:87]"
sEPS6 = "s88"; sEPS2 = "s[88:89]"; sLOG2E = "s90"; sLOG2 = "s[90:91]"; sT0 = "s92"; st4 = "s93"; sTM = "s[94:95]"
sPC = "s[96:97]"; sOUT0 = "s54"; sOUT1 = "s53"; sHCOL = "s99"; sSTR = "s98"; sAG = "s100"; sPSRC = "s101"
vL16 = "v1"
def vOX(q): return "v%d" % (2 + q)
def vOW(q): return "v%d" % (6 + q)
def vOB(q): return "v%d" % (10 + q)
vOH = "v14"
def vTW(s, cb): return "v%d" % (15 + 2 * s + cb)
def vXR(s): return "v%d" % (23 + s)
def vTH(s): return "v%d" % (27 + s)
vST = "v31"
ACCA, ACCB, BFR = 32, 96, 144
SEL = 176; CSBACC = 180
STV = 200; STL = 204; CSAACC = 224
VQ = 224; vRI = "v228"; vA0 = "v229"; vA1 = "v230"; vA2t = "v231"; CS = 232; B1V = 240; vT = "v247"
vTB = ["v248", "v249"]; vA2 = "v250"; vT0A = "v251"; vT1A = "v252"; vT1B = "v253"; vNO = 254
AR = 32; ACCO = 160; ACCS = 96
PQ = 128
KORD0 = list(range(0, 8)) + list(range(16, 24)) + [8, 9, 10, 11, 24, 25, 26, 27] + [12, 13, 14, 15]
KORD1 = list(range(16, 24)) + list(range(0, 8)) + [24, 25, 26, 27, 8, 9, 10, 11] + [14, 15, 12, 13]
XAND, ANDOR = 0x78, 0xA8

def vr(a, n=4): return "v[%d:%d]" % (a, a + n - 1)
def ar(a, n=4): return "a[%d:%d]" % (a, a + n - 1)
MF = "v_mfma_f32_32x32x16_bf16"
MS = "v_mfma_f32_16x16x32_bf16"

def spread(n, k):
    return [(n * (i + 1)) // k - (n * i) // k for i in range(k)]
def zipper(*seqs):
    out = []
    for i in range(max(len(s) for s in seqs)):
        for s in seqs:
            if i < len(s): out.append(s[i])
    return out

class Gen:
    def __init__(self, opt):
        self.o = opt
        self.e = Em()
        self.slow = []
        self.nlab = 0
        self.pend_stamp = None
        self.marks = {}
        self.vq = []
    def run(self, item):
        e = self.e
        if isinstance(item, str):
            if item.endswith(" lds"):
                nt = self.o.get("nt", 0)
                kind = 4 if (SW2 in item or SWO in item) else (1 if SX in item else (2 if (st3 in item or sWA in item) else 8))
                if nt & kind: item = item[:-4] + " nt lds"
            e(item)
        elif isinstance(item, list):
            for x in item: self.run(x)
        elif callable(item): item()
        elif item[0] == "mark":
            self.marks[(item[1], item[2])] = (e.vm_seq, e.lg_seq)
        elif item[0] == "waitvm":
            while (item[1], item[2]) not in self.marks: self.vm_now([self.vq.pop(0)])
            e.wait(vm=self.marks[(item[1], item[2])][0])
        elif item[0] == "waitlg":
            e.wait(lg=self.marks[(item[1], item[2])][1])
    def kord(self):
        return KORD1 if (self.cur == "B" and self.o.get("r2", 1)) else KORD0
    def hord(self, k):
        return k ^ 4 if (self.cur == "B" and self.o.get("r2", 1)) else k
    def bar(self):
        self.e.wait(lg=self.e.lg_seq); self.e.barrier()
    def site(self, name, fn):
        if self.o.get("stamps") != 3 or self.nsite.get(self.cur, 35) > 59:
            return fn()
        k = self.nsite.get(self.cur, 35); self.nsite[self.cur] = k + 2
        self.sites.setdefault(self.cur, []).append((name, k))
        self.stamp(k, force=True); self.e.smem_wait(); fn(); self.stamp(k + 1, force=True); self.e.smem_wait()
    nsite = {}; sites = {}; cur = "A"
    def stamp(self, idx, last=False, force=False):
        if not self.o.get("stamps"): return
        if self.o.get("stamps") == 2 and not last: return
        if self.o.get("stamps") == 5 and idx in (2, 7, 10, 18, 23, 28, 32):
            self.e.raw("\ts_memrealtime s[84:85]"); self.e.smem_wait(); self.e("v_writelane_b32 %s, s84, %d" % (vST, 28 + idx))
        if self.o.get("stamps") == 5 and not (last or idx in (2, 7, 10, 18, 23, 28, 32)): return
        if self.o.get("stamps") in (3, 4) and not (last or force or idx in (1, 2, 10, 18, 23, 32)): return
        e = self.e
        if self.pend_stamp is not None:
            e("v_writelane_b32 %s, s94, %d" % (vST, self.pend_stamp))
        e.raw("\ts_memtime %s" % sTM)
        self.pend_stamp = idx
        if last:
            e.smem_wait()
            e("v_writelane_b32 %s, s94, %d" % (vST, idx))
            e.raw("\ts_memrealtime %s" % sTM)
            e.smem_wait()
            e("v_writelane_b32 %s, s94, 63" % vST)
            e("v_writelane_b32 %s, %s, 62" % (vST, sT0))
            if self.o.get("enc") is not None:
                self.nlab += 1; n = self.nlab
                e("s_cmp_lg_u32 s2, %d" % self.o.get("encwg", 8))
                e("s_cbranch_scc1 L_dbg%d" % n)
                if self.o["enc"] == 63:
                    e("s_sub_u32 s3, s94, %s" % sT0)
                    e("s_lshl3_add_u32 s3, s3, s94")
                    e.raw("L_enc%d:\n\ts_sleep 4\n\ts_memrealtime s[94:95]\n\ts_waitcnt lgkmcnt(0)\n\ts_sub_u32 s95, s3, s94\n\ts_cmp_gt_i32 s95, 0\n\ts_cbranch_scc1 L_enc%d" % (n, n))
                else:
                    e("v_readlane_b32 s3, %s, %d" % (vST, self.o["enc"]))
                    e("v_readlane_b32 s95, %s, 0" % vST)
                    e("s_nop 3")
                    e("s_sub_u32 s3, s3, s95")
                    e.raw("\ts_memtime s[94:95]\n\ts_waitcnt lgkmcnt(0)")
                    e("s_lshl3_add_u32 s3, s3, s94")
                    e.raw("L_enc%d:\n\ts_sleep 4\n\ts_memtime s[94:95]\n\ts_waitcnt lgkmcnt(0)\n\ts_sub_u32 s95, s3, s94\n\ts_cmp_gt_i32 s95, 0\n\ts_cbranch_scc1 L_enc%d" % (n, n))
                e.label("L_dbg%d" % n)
                return
            e("s_lshl_b32 s94, s2, 10")
            e("s_lshl_b32 s95, %s, 8" % sWAVE)
            e("s_add_u32 s94, s94, s95")
            e("s_add_u32 s94, s94, %d" % STAMP)
            e("v_lshlrev_b32 v0, 2, v0")
            e("buffer_store_dword %s, v0, %s, s94 offen" % (vST, SWS))
    def retry(self, check, reload, mid=None, first=None):
        e = self.e
        if first: self.run(check[:3]); self.run(first); self.run(check[3:])
        else: self.run(check)
        self.run(mid if mid else "s_nop 0")
        if self.o.get("nocheck"): return
        if callable(reload): reload = reload()
        self.nlab += 1; n = self.nlab
        e("s_cbranch_vccnz L_slow%d" % n)
        e.label("L_back%d" % n)
        self.slow += (["L_slow%d:" % n, "\ts_mov_b32 %s, 0" % sSPIN, "L_spin%d:" % n] + ["\t" + x for x in reload]
                      + ["\ts_waitcnt vmcnt(0)"] + ["\t" + x for x in check]
                      + ["\ts_add_u32 %s, %s, 1" % (sSPIN, sSPIN), "\ts_nop 1", "\ts_cbranch_vccz L_back%d" % n,
                         "\ts_cmp_lt_u32 %s, 0x4000" % sSPIN, "\ts_cbranch_scc1 L_spin%d" % n, "\ts_branch L_back%d" % n])
    def get_nonce(self):
        e = self.e
        ld = "buffer_load_dwordx2 v[%d:%d], off, %s, 0 sc1" % (vNO, vNO + 1, SDBG)
        def check():
            self.retry(["v_cmp_eq_u32 vcc, 0, v%d" % (vNO + 1)], ["s_sleep 1", ld])
        tags = ["v_readfirstlane_b32 s60, v%d" % vNO, "v_readfirstlane_b32 s61, v%d" % (vNO + 1),
                "v_and_b32 %s, 15, v0" % vT1B, "v_min_u32 %s, 14, %s" % (vT1B, vT1B), "v_lshl_add_u32 %s, %s, 1, 2" % (vT1B, vT1B),
                "v_lshrrev_b32 %s, %s, v%d" % (vT1B, vT1B, vNO), "s_and_b32 %s, s60, 3" % sE, "v_and_b32 %s, 3, %s" % (vT1B, vT1B),
                "s_mul_i32 s3, %s, 0x8001" % sE, "s_mov_b32 %s, 0x10001" % sMT, "s_and_b32 s3, s3, %s" % sMT, "s_mul_i32 s3, s3, 0x8001",
                "v_mul_u32_u24 %s, 0x8001, %s" % (vT1A, vT1B), "v_mov_b32 %s, s3" % vT0A, "v_and_b32 %s, %s, %s" % (vT1A, sMT, vT1A),
                "s_bfe_u32 %s, s60, 0x20002" % sH0, "v_lshl_or_b32 %s, %s, 15, %s" % (vT1A, vT1A, vT1A)]
        return ld, [check, tags]
    def tag16(self, p):
        return ["v_bfi_b32 v%d, %s, %s, v%d" % (p, sMT, vT0A, p), "v_bfi_b32 v%d, %s, %s, v%d" % (p + 1, sMT, vT1A, p + 1)]
    def tagh(self, p):
        return ["v_and_or_b32 v%d, %s, %s, v%d" % (p, vT0A, sMH, p), "v_and_or_b32 v%d, %s, %s, v%d" % (p + 1, vT1A, sMH, p + 1)]
    def tag32(self, p):
        return ["v_bfi_b32 v%d, 3, %s, v%d" % (p, sE, p), "v_bfi_b32 v%d, 3, %s, v%d" % (p + 1, vT1B, p + 1)]
    def prologue(self):
        e = self.e; o = self.o
        e("s_cmp_ge_u32 s2, 256")
        e("s_cbranch_scc1 L_exit")
        if o.get("stamps"):
            e.raw("\ts_memrealtime s[92:93]")
            e.raw("\ts_memtime %s" % sTM)
            self.pend_stamp = 0
        if o.get("jit"):
            e("s_mul_i32 s3, s2, %d" % o["jit"]); e("s_lshr_b32 s3, s3, %d" % o.get("jits", 0)); e("s_and_b32 s3, s3, 15"); e("s_mul_i32 s3, s3, %d" % o.get("jitn", 20))
            e.raw("L_jit:\n\ts_cmp_eq_u32 s3, 0\n\ts_cbranch_scc1 L_jitd\n\ts_sleep 1\n\ts_sub_u32 s3, s3, 1\n\ts_branch L_jit\nL_jitd:")
        e("s_load_dwordx16 s[64:79], s[0:1], 0")
        e("s_load_dwordx4 s[80:83], s[0:1], 64")
        e("s_load_dwordx2 s[84:85], s[0:1], 80")
        e.raw("\ts_getpc_b64 %s" % sPC)
        e.label("L_pc")
        e("s_lshr_b32 %s, s2, 3" % st3)
        e("s_and_b32 %s, %s, 3" % (st0, st3))
        e("s_lshl_b32 %s, %s, 15" % (st0, st0))
        e("v_lshl_add_u32 v2, v0, 7, %s" % st0)
        e("v_lshrrev_b32 v3, 6, v0")
        e("v_min_u32 v2, L_end-L_pc-4, v2")
        e("v_readfirstlane_b32 %s, v3" % sWAVE)
        e("global_load_dword v195, v2, %s" % sPC)
        e("v_and_b32 v0, 63, v0")
        e("s_and_b32 %s, s2, 7" % st2)
        e("s_and_b32 %s, %s, 7" % (st0, st3))
        e("s_lshr_b32 %s, %s, 2" % (sRB, st2))
        e("s_lshl3_add_u32 %s, %s, %s" % (sRB, sRB, st0))
        e("s_lshr_b32 %s, %s, 3" % (st1, st3))
        rmode = o.get("rot", 8)
        if rmode == 8:
            e("s_lshl1_add_u32 %s, %s, %s" % (sROT, st1, st0))
            if o.get("rpar", 1): e("s_add_u32 %s, %s, %s" % (sROT, sROT, st2))
            e("s_and_b32 %s, %s, 7" % (sROT, sROT))
        elif rmode == 2:
            e("s_add_u32 %s, %s, %s" % (sROT, st1, st0))
            e("s_and_b32 %s, %s, 1" % (sROT, sROT))
            e("s_lshl_b32 %s, %s, 2" % (sROT, sROT))
        elif rmode == 1:
            e("s_and_b32 %s, %s, 3" % (sROT, st2))
            e("s_lshl_b32 %s, %s, 1" % (sROT, sROT))
        else:
            e("s_mov_b32 %s, 0" % sROT)
        e("v_lshrrev_b32 v32, 3, v0")
        e("v_and_b32 v33, 7, v0")
        e("v_lshrrev_b32 v34, 4, v0")
        e("v_xor_b32 v35, v33, v34")
        e("v_lshlrev_b32 v35, 4, v35")
        e("v_lshl_add_u32 %s, v32, 10, v35" % vOX(0))
        e("v_xor_b32 v36, 64, %s" % vOX(0))
        e("v_add_u32 %s, 7168, v36" % vOX(1))
        e("v_add_u32 %s, 14336, %s" % (vOX(2), vOX(0)))
        e("v_add_u32 %s, 21504, v36" % vOX(3))
        e("s_lshl2_add_u32 %s, %s, %s" % (sHST, sRB, sWAVE))
        e("s_lshl_b32 %s, %s, 15" % (sXB, sHST))
        e("s_lshl_b32 %s, %s, 14" % (sM0X, sWAVE))
        e("s_add_u32 %s, %s, %d" % (sM0X, sM0X, XW))
        e("s_mov_b32 m0, %s" % sM0X)
        e("s_lshl_b32 %s, %s, 7" % (sWA, sROT))
        e("s_add_u32 %s, %s, %s" % (sWA, sWA, sXB))
        e("s_lshr_b32 %s, %s, 1" % (sTYPE, st1))
        e("s_and_b32 %s, %s, 3" % (sIJ, st2))
        e("s_and_b32 %s, %s, 1" % (st1, st1))
        e("s_lshl1_add_u32 %s, %s, %s" % (sIJ, sIJ, st1))
        e("s_lshl3_add_u32 %s, %s, %s" % (st0, sTYPE, sIJ))
        e("s_lshl4_add_u32 %s, %s, %s" % (st0, sRB, st0))
        e("s_lshl2_add_u32 %s, %s, %s" % (sSTR, st0, sWAVE))
        e("s_lshl_b32 %s, %s, 11" % (st0, sSTR))
        e("v_lshlrev_b32 %s, 4, v0" % vL16)
        e("s_mov_b32 s6, 2097152")
        e("s_mov_b32 s7, 0x20000")
        e.smem_wait()
        e("s_mov_b32 s4, s64")
        e("s_and_b32 s5, s65, 0xffff")
        def srd(base, lo, hi, nbytes):
            e("s_mov_b32 s%d, s%d" % (base, lo))
            e("s_and_b32 s%d, s%d, 0xffff" % (base + 1, hi))
            e("s_mov_b32 s%d, %d" % (base + 2, nbytes))
            e("s_mov_b32 s%d, 0x20000" % (base + 3))
        srd(20, 84, 85, WS_BYTES if (not o.get("stamps") or o.get("enc") is not None) else STAMP + 256 * 1024)
        e("s_or_b32 %s, s2, %s" % (sWB, sWAVE))
        e("s_cmp_lg_u32 %s, 0" % sWB)
        e("s_cbranch_scc1 L_ep1")
        e.raw("\ts_mov_b32 s3, %d\n\tbuffer_load_dword v194, off, %s, s3 sc1" % (EP, SWS))
        e.label("L_ep1")
        sq_ep = e.vm_seq
        e("buffer_load_dwordx4 v[208:211], %s, %s, %s offen" % (vL16, SX, st0))
        e("buffer_load_dwordx4 v[212:215], %s, %s, %s offen offset:1024" % (vL16, SX, st0))
        for q in range(4):
            self.run("buffer_load_dwordx4 %s, %s, %s offen offset:%d lds" % (vOX(q), SX, sWA, q * 1024))
        self.stamp(1)
        e("s_movk_i32 %s, 3072" % sSTRIDE)
        e("s_cmp_eq_u32 %s, 0" % sTYPE)
        e("s_cselect_b32 %s, %s, 3584" % (sSTRIDE, sSTRIDE))
        e("s_cselect_b32 s8, s66, s72")
        e("s_cselect_b32 s9, s67, s73")
        e("s_mov_b32 s10, 1572864")
        e("s_cselect_b32 s10, s10, 1835008")
        e("s_and_b32 s9, s9, 0xffff")
        e("s_mov_b32 s11, 0x20000")
        e("v_and_b32 v35, 16, v0")
        e("v_lshrrev_b32 v35, 2, v35")
        e("v_xor_b32 v35, v33, v35")
        e("v_lshlrev_b32 v35, 4, v35")
        e("v_mul_lo_u32 v36, v32, %s" % sSTRIDE)
        e("v_add_u32 %s, v36, v35" % vOW(0))
        e("s_lshl_b32 %s, %s, 3" % (st0, sSTRIDE))
        e("s_sub_u32 %s, %s, 1024" % (st0, st0))
        for q in range(1, 4):
            e("v_add_u32 %s, %s, %s" % (vOW(q), st0, vOW(q - 1)))
        e("s_lshl_b32 %s, %s, 6" % (sS64, sSTRIDE))
        e("s_lshl_b32 %s, %s, 12" % (sM0WA, sWAVE))
        e("s_lshr_b32 %s, %s, 1" % (st0, sWAVE))
        e("s_lshr_b32 %s, %s, 1" % (st1, sIJ))
        e("s_mul_i32 %s, %s, 7" % (sWH, st1))
        e("s_and_b32 %s, %s, 1" % (sWB, sIJ))
        e("s_lshl2_add_u32 %s, %s, %s" % (st1, sWB, sWH))
        e("s_lshl_b32 %s, %s, 7" % (st4, st1))
        e("s_add_u32 %s, %s, %s" % (st1, st1, st0))
        e("s_lshl3_add_u32 %s, %s, %s" % (st2, st0, sIJ))
        e("s_add_u32 %s, %s, 8" % (st2, st2))
        e("s_cmp_eq_u32 %s, 0" % sTYPE)
        e("s_cselect_b32 %s, %s, %s" % (sWA, st2, st1))
        e("s_lshl_b32 %s, %s, 7" % (sWA, sWA))
        e("s_and_b32 %s, %s, 1" % (st0, sWAVE))
        e("s_lshl_b32 %s, %s, 5" % (st0, st0))
        e("s_mul_i32 %s, %s, %s" % (st0, st0, sSTRIDE))
        e("s_add_u32 %s, %s, %s" % (sWA, sWA, st0))
        e("s_mul_i32 %s, %s, %s" % (st3, sROT, sS64))
        e("s_add_u32 %s, %s, %s" % (st3, st3, sWA))
        self.vm_now(self.dma_a(0, 0)[4:])
        srd(36, 82, 83, 256)
        srd(12, 76, 77, 1835008)
        srd(16, 68, 69, 524288)
        srd(24, 80, 81, 2097152)
        srd(28, 74, 75, 3584)
        srd(32, 78, 79, 1024)
        e("buffer_load_dword v193, off, %s, 0" % SB2)
        e("buffer_load_dword v192, off, %s, 0 offset:512" % SB2)
        e("s_mov_b32 %s, %s" % (sR, sHST))
        e("s_mul_i32 %s, %s, %d" % (sHST, sHST, 144 * 1024))
        e("s_lshl_b32 %s, %s, 11" % (sM0WB, sWAVE))
        e("s_lshl_b32 %s, %s, 10" % (sM0WH, sWAVE))
        e("s_lshl_b32 %s, %s, 2" % (st0, sWH))
        e("s_lshl1_add_u32 %s, %s, %s" % (st1, sWB, st0))
        e("s_add_u32 %s, %s, 12" % (st1, st1))
        e("s_lshl_b32 %s, %s, 10" % (st1, st1))
        e("s_add_u32 %s, %s, %s" % (sHB2, st1, sHST))
        e("s_lshl4_add_u32 %s, %s, %s" % (st1, sWB, st0))
        e("s_lshl_b32 %s, %s, 10" % (st1, st1))
        e("s_add_u32 %s, %s, %s" % (sHA0, st1, sHST))
        e("s_add_u32 %s, %s, 4096" % (sHA1, sHA0))
        e("s_add_u32 %s, %s, 8192" % (sHB1, sHA0))
        e("s_add_u32 %s, %s, 3" % (sWH, sWH))
        e("s_lshl_b32 %s, %s, 7" % (sWH, sWH))
        e("s_lshl_b32 %s, %s, 6" % (sWB, sWB))
        e("s_add_u32 %s, %s, %s" % (sHCOL, sWH, sWB))
        e("s_add_u32 %s, %s, 256" % (sWB, st4))
        e("s_lshl_b32 %s, %s, 7" % (st1, sIJ))
        e("s_cmp_eq_u32 %s, 0" % sTYPE)
        e("s_cselect_b32 %s, %s, %s" % (sWB, st1, sWB))
        e("s_lshl_b32 %s, %s, 4" % (st0, sWAVE))
        e("s_mul_i32 %s, %s, %s" % (st0, st0, sSTRIDE))
        e("s_add_u32 %s, %s, %s" % (sWB, sWB, st0))
        e("s_add_u32 %s, %s, %s" % (sWH, sHCOL, st0))
        e("s_lshl2_add_u32 %s, %s, %s" % (sHEAD, sIJ, sWAVE))
        e("s_and_b32 %s, s2, 7" % st2)
        e("s_lshr_b32 %s, s2, 3" % st3)
        e("s_and_b32 %s, %s, 3" % (st0, st3))
        e("s_lshl2_add_u32 %s, %s, %s" % (sRT, st2, st0))
        e("s_lshr_b32 %s, %s, 2" % (sCC, st3))
        if o.get("ccx"): e("s_xor_b32 %s, %s, %d" % (sCC, sCC, o["ccx"]))
        e("s_lshl_b32 %s, %s, 7" % (sBB, sCC))
        e("s_mul_i32 %s, %s, %d" % (sW2B, sWAVE, 448 * 1024))
        e("s_add_u32 %s, %s, %s" % (sW2B, sW2B, sBB))
        e("s_lshl_b32 %s, %s, 17" % (sWOB, sWAVE))
        e("s_add_u32 %s, %s, %s" % (sWOB, sWOB, sBB))
        e("s_lshl2_add_u32 %s, %s, %s" % (st0, st3, sWAVE))
        e("s_lshr_b32 %s, %s, 6" % (st1, st0))
        e("s_bfe_u32 %s, %s, 0x20004" % (st2, st0))
        e("s_mul_i32 %s, %s, 14" % (st2, st2))
        e("s_add_u32 %s, %s, %s" % (st1, st1, st2))
        e("s_and_b32 %s, %s, 15" % (st0, st0))
        e("s_lshl4_add_u32 %s, %s, %s" % (st0, st1, st0))
        e("s_lshl_b32 %s, %s, 11" % (sPSRC, st0))
        e("s_mul_i32 %s, %s, %d" % (st0, sRT, 288 * 1024))
        e("s_mul_i32 %s, %s, %d" % (sAW, sWAVE, 28 * 1024))
        e("s_add_u32 %s, %s, %s" % (sAW, sAW, st0))
        e("s_lshl_b32 %s, %s, 13" % (sAO, sWAVE))
        e("s_add_u32 %s, %s, %s" % (sAO, sAO, st0))
        e("s_add_u32 %s, %s, %d" % (sAO, sAO, 112 * 1024))
        e("v_lshl_add_u32 %s, v32, 10, v35" % vOB(0))
        for q in range(1, 4):
            e("v_add_u32 %s, 7168, %s" % (vOB(q), vOB(q - 1)))
        e("v_and_b32 v32, 3, v0")
        e("v_bfe_u32 v33, v0, 2, 2")
        e("v_bfe_u32 v34, v0, 4, 1")
        e("v_lshrrev_b32 v35, 5, v0")
        e("v_lshl_add_u32 v36, v35, 3, v33")
        e("v_and_b32 v37, 2, v33")
        e("v_xor_b32 v37, v37, v34")
        e("v_lshlrev_b32 v37, 5, v37")
        e("v_lshl_add_u32 v37, v32, 3, v37")
        e("v_lshl_add_u32 v38, v36, 7, v37")
        e("v_lshlrev_b32 v39, 5, v34")
        e("v_lshl_add_u32 v39, v32, 3, v39")
        e("v_lshl_add_u32 v39, v36, 6, v39")
        e("v_and_b32 v40, 31, v0")
        e("v_bfe_u32 v41, v0, 1, 3")
        e("v_xor_b32 v42, v41, v35")
        e("v_lshlrev_b32 v42, 4, v42")
        e("v_lshl_add_u32 v42, v40, 7, v42")
        e("v_add_u32 v42, %s, v42" % sM0X)
        for s in range(4):
            e("s_add_u32 %s, %s, %d" % (st0, sWAVE, s))
            e("s_and_b32 %s, %s, 3" % (st0, st0))
            e("s_lshl_b32 %s, %s, 11" % (st1, st0))
            e("v_add_u32 %s, %s, v38" % (vTW(s, 0), st1))
            e("v_xor_b32 %s, 64, %s" % (vTW(s, 1), vTW(s, 0)))
            e("s_lshl_b32 %s, %s, 10" % (st1, st0))
            e("v_add_u32 %s, %s, v39" % (vTH(s), st1))
            e("s_lshl_b32 %s, %s, 5" % (st1, st0))
            e("v_xor_b32 %s, %s, v42" % (vXR(s), st1))
        e("v_bfe_u32 v43, v0, 2, 1")
        e("v_cmp_eq_u32 vcc, v43, v34")
        e("v_mov_b32 v44, 0x3f803f80")
        for j in range(4): e("v_cndmask_b32 v%d, 0, v44, vcc" % (SEL + j))
        e("v_lshl_add_u32 v36, v35, 2, v33")
        e("v_lshl_add_u32 v36, v36, 7, v37")
        e("v_add_u32 %s, %s, v36" % (vTB[0], sM0X))
        e("v_xor_b32 %s, 64, %s" % (vTB[1], vTB[0]))
        e("v_add_u32 %s, %d, %s" % (vA2, 144 * 1024, vL16))
        e("v_lshrrev_b32 v36, 2, v0")
        e("v_mul_u32_u24 v36, 3584, v36")
        e("v_lshl_add_u32 %s, v32, 4, v36" % vOH)
        e("s_mov_b32 s64, 0xffff0000")
        e("s_mov_b32 s65, 0xffff0000")
        e("s_mov_b32 %s, 0x80008000" % sMH)
        e("s_mov_b32 s88, 0x358637bd")
        e("s_mov_b32 s89, 0x358637bd")
        e("s_mov_b32 s90, 0x3fb8aa3b")
        e("s_mov_b32 s91, 0x3fb8aa3b")
        e("s_mov_b32 s86, -1")
        e("s_mov_b32 s87, 0")
        e("s_or_b32 %s, s2, %s" % (st0, sWAVE))
        e("s_cmp_lg_u32 %s, 0" % st0)
        e("s_cbranch_scc1 L_ep2")
        r = e.raw
        r("\ts_memrealtime %s\n\ts_waitcnt vmcnt(%d) lgkmcnt(0)" % (sNONCE, e.vm_seq - sq_ep))
        r("\tv_readfirstlane_b32 %s, v194\n\ts_nop 3" % st0)
        r("\ts_and_b32 %s, %s, 3\n\ts_lshl_b32 %s, 1, %s" % (st1, st0, st3, st1))
        r("\ts_and_b32 %s, %s, 1\n\ts_bfe_u32 %s, %s, 0x10010\n\ts_lshl1_add_u32 %s, %s, %s\n\ts_bitset1_b32 %s, %s" % (st1, st0, st2, st0, st1, st2, st1, st3, st1))
        r("\ts_bfe_u32 %s, %s, 0x1000f\n\ts_lshr_b32 %s, %s, 31\n\ts_lshl1_add_u32 %s, %s, %s\n\ts_bitset1_b32 %s, %s" % (st1, st0, st2, st0, st1, st2, st1, st3, st1))
        r("\ts_ff0_i32_b32 %s, %s" % (st1, st3))
        r("\ts_andn2_b32 s60, s60, 3\n\ts_or_b32 s60, s60, %s\n\ts_or_b32 s61, s61, 0x80000000" % st1)
        r("\ts_mul_i32 %s, %s, 0x8001\n\ts_and_b32 %s, %s, 0x10001\n\ts_mul_i32 %s, %s, 0x8001\n\ts_or_b32 %s, %s, %s" % (st2, st1, st2, st2, st2, st2, st1, st1, st2))
        r("\tv_mov_b32 v%d, s60\n\tv_mov_b32 v%d, s61\n\tv_mov_b32 v194, %s\n\ts_mov_b32 s3, %d" % (vNO, vNO + 1, st1, EP))
        r("\ts_mov_b64 exec, 1\n\tbuffer_store_dwordx2 v[%d:%d], off, %s, 0 sc1\n\tbuffer_store_dword v194, off, %s, s3 sc1\n\ts_mov_b64 exec, -1" % (vNO, vNO + 1, SDBG, SWS))
        e.label("L_ep2")
        self.run(self.row_stats())
        self.vm_now(self.dma_a(1, 0))
        e("s_cmp_eq_u32 %s, 0" % sTYPE)
        e("s_cbranch_scc0 L_typeB")
    def dma_a(self, c, at):
        slot = c & 3
        pre = ["s_add_u32 %s, %s, %d" % (st0, sROT, c), "s_and_b32 %s, %s, 7" % (st0, st0),
               "s_mul_i32 %s, %s, %s" % (st1, st0, sS64), "s_lshl_b32 %s, %s, 7" % (st0, st0),
               "s_add_u32 m0, %s, %d" % (sM0X, slot * 4096),
               "s_add_u32 %s, %s, %s" % (st2, st0, sXB), "s_add_u32 %s, %s, %s" % (st3, st1, sWA)]
        out = []
        for q in range(4):
            out.append((at, pre if q == 0 else [], "buffer_load_dwordx4 %s, %s, %s offen offset:%d lds" % (vOX(q), SX, st2, q * 1024), []))
        for q in range(4):
            out.append((at, ["s_add_u32 m0, %s, %d" % (sM0WA, slot * 16384)] if q == 0 else [],
                        "buffer_load_dwordx4 %s, %s, %s offen offset:%d lds" % (vOW(q), SW, st3, q * 1024),
                        [("mark", "chunk", c)] if q == 3 else []))
        return out
    def dma_b1(self, c, at):
        pre = ["s_add_u32 %s, %s, %d" % (st0, sROT, c & 7), "s_and_b32 %s, %s, 7" % (st0, st0),
               "s_mul_i32 %s, %s, %s" % (st1, st0, sS64), "s_add_u32 m0, %s, %d" % (sM0WB, (c - 8) * 8192),
               "s_add_u32 %s, %s, %s" % (st1, st1, sWB)]
        return [(at, pre, "buffer_load_dwordx4 %s, %s, %s offen lds" % (vOW(0), SW, st1), []),
                (at, [], "buffer_load_dwordx4 %s, %s, %s offen offset:1024 lds" % (vOW(1), SW, st1), [("mark", "chunk", c)])]
    def dma_b2(self, j, at):
        pre = ["s_add_u32 %s, %s, %d" % (st0, sROT, j), "s_and_b32 %s, %s, 7" % (st0, st0),
               "s_mul_i32 %s, %s, %s" % (st1, st0, sS64), "s_add_u32 m0, %s, %d" % (sM0WH, j * 4096),
               "s_add_u32 %s, %s, %s" % (st1, st1, sWH)]
        return [(at, pre, "buffer_load_dwordx4 %s, %s, %s offen lds" % (vOH, SW, st1), [("mark", "chunk", 16 + j)])]
    def piece_dma(self, t, at):
        if t < 14: base, off, srd = sW2B, self.kord()[2 * t] * 16384, SW2
        else: base, off, srd = sWOB, self.hord(2 * (t - 14)) * 16384, SWO
        pre = ([("waitlg", "ptr", t - 4)] if t >= 4 else []) + ["s_add_u32 m0, %s, %d" % (sM0X, (t & 3) * 4096), "s_add_u32 %s, %s, %d" % (st2, base, off)]
        return [(at, pre if q == 0 else [], "buffer_load_dwordx4 %s, %s, %s offen offset:%d lds" % (vOB(q), srd, st2, q * 1024),
                 [("mark", "pdma", t)] if q == 3 else []) for q in range(4)]
    def vm_now(self, entries):
        for at, pre, ins, post in entries:
            self.run(pre); self.run(ins); self.run(post)
    def touch_global(self, at):
        k = 2 if self.o.get("tgo") else 1
        if k == 2 and self.cur == "B": return []
        pre = ["s_lshl2_add_u32 %s, s2, %s" % (st0, sWAVE), "s_lshr_b32 %s, s2, 3" % st1, "s_lshl2_add_u32 %s, %s, %s" % (st1, st1, sWAVE),
               "v_and_b32 v198, %d, v0" % (16 * k - 1), "v_min_u32 v199, %d, v198" % (14 * k - 1), "v_min_u32 v198, %d, v198" % (4 * k - 1), "v_cmp_gt_u32 vcc, %d, v0" % (16 * k)]
        for reg, n in (("v199", 14 * k), ("v198", 4 * k)):
            pre += ["s_mul_i32 %s, %s, %d" % (st2, st0, n), "v_add_lshl_u32 v197, %s, %s, 7" % (reg, st2),
                    "s_mul_i32 %s, %s, %d" % (st2, st1, n), "v_add_lshl_u32 %s, %s, %s, 10" % (reg, reg, st2),
                    "v_add_u32 %s, 384, %s" % (reg, reg), "v_cndmask_b32 %s, %s, v197, vcc" % (reg, reg)]
        m = sLO if k == 1 else "-1"
        return [(at, pre, ["s_mov_b64 exec, %s" % m, "buffer_load_dword v199, v199, %s, 0 offen" % SW2, "s_mov_b64 exec, -1"], []),
                (at, [], ["s_mov_b64 exec, %s" % m, "buffer_load_dword v198, v198, %s, 0 offen" % SWO, "s_mov_b64 exec, -1"], [])]
    def touch_l2(self, r, at):
        kp = self.kord()[4 * r] // 2
        assert self.kord()[4 * r + 2] // 2 == kp + 1
        pre = ["s_add_u32 %s, %s, %d" % (st0, sPSRC, kp * 32768)]
        if r == 0: pre += ["v_and_b32 v197, 15, v0", "v_lshlrev_b32 v197, 7, v197"]
        return [(at, pre, ["s_mov_b64 exec, 0xffff", "buffer_load_dword v196, v197, %s, %s offen" % (SW2, st0), "s_mov_b64 exec, -1"], [])]
    def touch_ha(self, at):
        pre = ["v_bfe_u32 v254, v0, 3, 2", "s_lshl_b32 %s, %s, 2" % (st0, sCC), "v_add_u32 v254, %s, v254" % st0,
               "v_and_b32 v255, 1, v254", "v_mul_u32_u24 v255, %d, v255" % (144 * 1024), "v_lshrrev_b32 v254, 1, v254",
               "v_lshl_add_u32 v255, v254, 10, v255", "v_and_b32 v254, 8, v254", "v_lshl_add_u32 v255, v254, 10, v255",
               "v_and_b32 v254, 7, v0", "v_lshl_add_u32 v254, v254, 7, v255"]
        return [(at, pre, ["s_mov_b64 exec, %s" % sLO, "buffer_load_dword v255, v254, %s, %s offen sc1" % (SWS, sAW), "s_mov_b64 exec, -1"], [])]
    def touch_code(self, label, at):
        pre = ["v_lshlrev_b32 v254, 7, v0", "s_lshl_b32 %s, %s, 13" % (st0, sWAVE), "s_add_u32 %s, %s, %s-L_pc" % (st0, st0, label),
               "v_add_u32 v254, %s, v254" % st0, "v_min_u32 v254, %s, v254" % ("L_typeB-L_pc" if self.cur == "A" else "L_end-L_pc-4")]
        return [(at, pre, "global_load_dword v255, v254, %s" % sPC, [])]
    def pslot(self, t):
        k = t & 15
        return 128 + 16 * k if k < 8 else 16 * (k - 8)
    def piece_tr(self, t):
        it = [("waitvm", "pdma", t)]
        b = self.pslot(t)
        for u in range(2):
            for cb in range(2):
                for tt in range(2):
                    it.append("ds_read_b64_tr_b16 %s, %s offset:%d" % (ar(b + 8 * u + 4 * cb + 2 * tt, 2), vTB[cb], (t & 3) * 4096 + u * 2048 + tt * 1024))
        it.append(("mark", "ptr", t))
        return it
    def fbuf(self, n):
        return BFR + 16 * (n & 1) if n < 32 else BFR + 8 * (n & 3)
    def g_reads(self, n):
        buf = self.fbuf(n)
        it = []
        if n < 32:
            c, s = n >> 2, n & 3
            slot = c & 3
            it.append("ds_read_b128 %s, %s offset:%d" % (ar(4 * n), vXR(s), slot * 4096))
            for i in range(4):
                for t in range(2):
                    it.append("ds_read_b64_tr_b16 %s, %s offset:%d" % (vr(buf + 4 * i + 2 * t, 2), vTW(s, i & 1), slot * 16384 + (i >> 1) * 8192 + t * 512))
        elif n < 64:
            c, s = n >> 2, n & 3
            for i in range(2):
                for t in range(2):
                    it.append("ds_read_b64_tr_b16 %s, %s offset:%d" % (vr(buf + 4 * i + 2 * t, 2), vTW(s, i), (c - 8) * 8192 + t * 512))
        else:
            for i in range(2):
                k = 2 * (n - 64) + i
                for t in range(2):
                    it.append("ds_read_b64_tr_b16 %s, %s offset:%d" % (vr(buf + 4 * i + 2 * t, 2), vTH(k & 3), (k >> 2) * 4096 + t * 256))
        it.append(("mark", "frag", n))
        return it
    def g_mfmas(self, n, typ):
        buf = self.fbuf(n)
        out = []
        if n < 32:
            for i in range(4):
                d = vr(ACCA + 16 * i, 16); w = vr(buf + 4 * i); x = ar(4 * n)
                a, b = (x, w) if typ == "A" else (w, x)
                out.append("%s %s, %s, %s, %s" % (MF, d, a, b, "0" if n == 0 else d))
        elif n < 64:
            for i in range(2):
                d = vr(ACCB + 16 * i, 16)
                out.append("%s %s, %s, %s, %s" % (MF, d, vr(buf + 4 * i), ar(4 * (n - 32)), "0" if n == 32 else d))
        else:
            for i in range(2):
                k = 2 * (n - 64) + i
                d = vr(ACCB + 32, 16)
                out.append("%s %s, %s, %s, %s" % (MF, d, vr(buf + 4 * i), ar(4 * k), "0" if k == 0 else d))
        return out
    def g_small(self, n):
        it = []
        buf = self.fbuf(n)
        if n < 32:
            if (n & 3) == 0:
                for i in range(4):
                    it.append("%s %s, %s, %s, %s" % (MS, vr(CSAACC + 4 * i), vr(SEL), vr(buf + 4 * i), "0" if n == 0 else vr(CSAACC + 4 * i)))
        elif n < 64:
            if (n & 3) == 0:
                for i in range(2):
                    it.append("%s %s, %s, %s, %s" % (MS, vr(CSBACC + 4 * i), vr(SEL), vr(buf + 4 * i), "0" if n == 32 else vr(CSBACC + 4 * i)))
        elif (n & 1) == 0:
            it.append("%s %s, %s, %s, %s" % (MS, vr(CSBACC + 8), vr(SEL), vr(buf), "0" if n == 64 else vr(CSBACC + 8)))
        return it
    def has_vm(self, items):
        for x in items:
            if isinstance(x, str) and (x.startswith("buffer_") or x.startswith("global_")): return True
            if isinstance(x, list) and self.has_vm(x): return True
        return False
    def gap(self, n, rd, extra, sm, nvm):
        picks = []
        ready = lambda x: all(not (isinstance(y, tuple) and y[0] == "waitlg") or (y[1], y[2]) in self.marks for y in x[1])
        while len(picks) < nvm and self.vq and self.vq[0][0] <= n and ready(self.vq[0]):
            picks.append(self.vq.pop(0))
            if picks[-1][1] and len(picks) > 1:
                self.vq.insert(0, picks.pop()); break
        if picks: self.run(picks[0][1])
        self.run(rd)
        parts = len(picks) + 1
        cuts = spread(len(extra), parts)
        pos = 0
        for k in range(parts):
            self.run(extra[pos:pos + cuts[k]]); pos += cuts[k]
            if k == 0: self.run(sm)
            if k < len(picks):
                self.run(picks[k][2]); self.run(picks[k][3])
    def left(self):
        self.vq = [x for x in self.vq if not (vOB(0) in x[2] and SW2 in x[2] + SWO) or True]
        nt = 0
        while ("ptr", nt) in self.marks: nt += 1
        return self.nd_all, nt
    def try_tr(self, t):
        def f():
            if ("pdma", t) in self.marks and self.e.vm_seq - self.marks[("pdma", t)][0] >= self.o.get("trmin", 8) - 4 and not self.late: self.run(self.piece_tr(t))
            else: self.late.append(t)
        return f
    def block(self, n, items, every):
        for i in range(0, len(items), every):
            kk = i // every - self.o.get("b0", 0)
            if self.o.get("bstamp") and n == 32 and 0 <= kk < 27: self.stamp(35 + kk, force=True)
            ch = items[i:i + every]
            self.gap(n, [], ch, [], 0 if self.has_vm(ch) else 1)
    def gemm1(self, typ, nsteps, front, blocks, bars, queue={}, rate=lambda n: 0):
        e = self.e
        e.wait(vm=self.marks[("chunk", 0)][0])
        e.barrier()
        self.stamp(2)
        self.run(self.g_reads(0))
        q = []
        nr = 1
        for n in range(nsteps):
            if n == 32: e.label("L_mid" + self.cur)
            if n in blocks:
                blocks[n]()
            mf = self.g_mfmas(n, typ)
            sm = self.g_small(n)
            ahead = 1 if n < 31 else 2
            rd = []
            lim = min([bars[b][1] for b in bars if b > n and bars[b][1]] + [nsteps])
            while nr <= n + ahead and nr < lim and (nr < 32 or n >= 31):
                rd += self.g_reads(nr); nr += 1
            q += queue.get(n, [])
            fr = []
            late, self.late = self.late, []
            for t in late + self.trat.get(n, []):
                if ("pdma", t) in self.marks and self.e.vm_seq - self.marks[("pdma", t)][0] >= self.o.get("trmin", 8) and not self.late: fr += self.piece_tr(t)
                else: self.late.append(t)
            extra = list(front.get(n, [])) + fr + q[:rate(n)]; q = q[rate(n):]
            k = len(mf)
            per = spread(len(extra), k); pers = spread(len(sm), k)
            perr = spread(len(rd), k - 1) + [0]
            if n == 31: perr = [5, 0, 0, 5]
            vr_ = ([0, 1, 1, 1] if (n & 1) else [0, 1, 1, 0]) if n < 32 else [1, 1]
            if self.o.get("slow" + self.cur.lower(), 99) <= n < 32: vr_ = [0, 1, 0, 0] if (n & 1) or self.o.get("slowr", 2) == 2 else [0, 0, 0, 0]
            pos = ps = pr = 0
            self.run(("waitlg", "frag", n))
            if (n & 3) == 0 and n: self.stamp(2 + (n >> 2))
            if self.o.get("stamps") == 4 and 0 <= n - self.o.get("g0", 66) < 14: self.stamp(35 + n - self.o.get("g0", 66), force=True)
            for i in range(k):
                self.run(mf[i])
                if i == 0 and n in bars:
                    self.run(bars[n][0])
                    e.barrier()
                ex = extra[pos:pos + per[i]]
                nv = vr_[i] - (1 if self.has_vm(ex) else 0)
                self.gap(n, rd[pr:pr + perr[i]], ex, sm[ps:ps + pers[i]], max(nv, 0))
                pos += per[i]; ps += pers[i]; pr += perr[i]
        self.run(q)
        e.label("L_p2" + self.cur)
        self.stamp(2 + (nsteps >> 2))
        if self.o.get("verbose"): print("gemm1 end: vq", len(self.vq))
    def row_stats(self):
        S = [216, 217, 218, 219]
        it = ["v_mov_b32 v%d, 0" % r for r in S] + ["v_mov_b32 v220, 0x3f803f80"]
        for j in range(4):
            for r in range(2):
                it += ["v_dot2c_f32_bf16 v%d, v220, v%d" % (S[r], 208 + 4 * r + j), "v_dot2c_f32_bf16 v%d, v%d, v%d" % (S[2 + r], 208 + 4 * r + j, 208 + 4 * r + j)]
        for sh in (8, 4, 2, 1):
            for r in S: it.append("v_add_f32_dpp v%d, v%d, v%d row_ror:%d row_mask:0xf bank_mask:0xf" % (r, r, r, sh))
        it += ["v_permlane32_swap_b32 v216, v217", "v_permlane32_swap_b32 v218, v219", "v_add_f32 v216, v216, v217", "v_add_f32 v218, v218, v219",
               "v_mov_b32 v217, v216", "v_mov_b32 v219, v218", "v_permlane16_swap_b32 v216, v217", "v_permlane16_swap_b32 v218, v219",
               "v_add_f32 v216, v216, v217", "v_add_f32 v218, v218, v219"]
        t0, t1, t2 = "v216", "v218", "v217"
        it += ["v_mul_f32 %s, 0x3b000000, %s" % (t0, t0), "v_mul_f32 %s, 0x3b000000, %s" % (t1, t1),
               "v_fma_f32 %s, -%s, %s, %s" % (t1, t0, t0, t1),
               "v_max_f32 %s, 0, %s" % (t1, t1),
               "v_cvt_pk_bf16_f32 %s, -%s, %s" % (t2, t0, t1),
               "v_and_b32 %s, 0xffff0000, %s" % (t1, t2),
               "v_lshlrev_b32 %s, 16, %s" % (t0, t2),
               "v_add_f32 %s, 0x3727c5ac, %s" % (t1, t1),
               "v_cvt_pk_bf16_f32 %s, %s, %s" % (t1, t1, t1),
               "v_lshlrev_b32 %s, 16, %s" % (t1, t1),
               "v_sqrt_f32 %s, %s" % (t1, t1),
               "v_cvt_pk_bf16_f32 v%d, %s, %s" % (STV + 2, t1, t0),
               "v_lshlrev_b32 %s, 16, v%d" % (t1, STV + 2),
               "v_rcp_f32 v%d, %s" % (STV + 3, t1)]
        return it
    def stats_store(self):
        return ["v_mov_b32 v%d, s60" % STV, "v_mov_b32 v%d, s61" % (STV + 1), "v_lshrrev_b32 v216, 5, v0", "v_lshlrev_b32 v216, 4, v216",
                "s_lshl_b32 s3, %s, 5" % sSTR, "s_add_u32 s3, s3, %d" % RV,
                ["s_mov_b32 s84, 1", "s_mov_b32 s85, 1", "s_mov_b64 exec, %s" % sM1,
                 "buffer_store_dwordx4 %s, v216, %s, s3 offen sc1" % (vr(STV), SWS), "s_mov_b64 exec, -1"]]
    STLD = "buffer_load_dwordx4 %s, v191, %s, %s offen sc1" % (vr(STL), SWS, sSTR)
    def stats_load(self, at):
        pre = ["v_and_b32 v191, 31, v0", "v_lshlrev_b32 v191, 4, v191", "s_lshl_b32 %s, %s, 9" % (sSTR, sR), "s_add_u32 %s, %s, %d" % (sSTR, sSTR, RV)]
        return [(at, pre, self.STLD, [])]
    def stats_use(self):
        chk = lambda: self.retry(["v_cmp_ne_u64 vcc, %s, %s" % (sNONCE, vr(STL, 2))], [self.STLD])
        return [chk, "v_cndmask_b32 v%d, 0, v%d, %s" % (VQ + 1, STL + 2, sLO), "v_mov_b32 %s, v%d" % (vRI, STL + 3),
                "v_lshrrev_b32 v%d, 16, v%d" % (VQ, VQ + 1), "v_mov_b32 v%d, 0" % (VQ + 2), "v_mov_b32 v%d, 0" % (VQ + 3),
                "v_lshl_or_b32 v%d, v%d, 16, v%d" % (VQ, VQ, VQ)]
    def cs_write(self, k, acc, ncb):
        it = ["s_lshl_b32 s3, %s, 10" % sWAVE, "s_add_u32 s3, s3, %d" % CSX[k], "v_add_u32 %s, s3, %s" % (vT, vL16)]
        for i in range(1, ncb): it.append("v_mov_b32 v%d, v%d" % (acc + i, acc + 4 * i))
        it += ["ds_write_b128 %s, %s" % (vT, vr(acc)), ("mark", "csw", k)]
        return it
    def cs_reads(self, k, tmp):
        return ["v_add_u32 %s, %d, %s" % (vT, CSX[k], vL16)] + ["ds_read_b128 %s, %s offset:%d" % (vr(tmp + 4 * w), vT, w * 1024) for w in range(4)]
    def cs_sum(self, ncb, tmp):
        it = []
        for i in range(ncb):
            it.append("v_add_f32 v%d, v%d, v%d" % (tmp + i, tmp + i, tmp + 4 + i))
            it.append("v_add_f32 v%d, v%d, v%d" % (tmp + 8 + i, tmp + 8 + i, tmp + 12 + i))
        for i in range(ncb):
            it.append("v_add_f32 v%d, v%d, v%d" % (CS + i, tmp + i, tmp + 8 + i))
        return it
    def ufrag(self, ci, uq, b):
        c = "v%d" % (CS + ci); t0, t1 = "v%d" % (uq + 2), "v%d" % (uq + 3)
        it = ["v_cvt_pk_bf16_f32 %s, %s, %s" % (t0, c, c), "v_lshlrev_b32 %s, 16, %s" % (t0, t0), "v_sub_f32 %s, %s, %s" % (t0, c, t0),
              "v_cvt_pk_bf16_f32 v%d, %s, %s" % (uq, c, t0), "v_and_b32 %s, 0xffff0000, v%d" % (t1, uq), "v_sub_f32 %s, %s, %s" % (t0, t0, t1)]
        if b is not None: it += ["v_lshlrev_b32 %s, 16, v%d" % (t1, b), "v_cvt_pk_bf16_f32 v%d, %s, %s" % (uq + 1, t1, t0)]
        else: it += ["v_cvt_pk_bf16_f32 v%d, 0, %s" % (uq + 1, t0)]
        return it + ["v_mov_b32 %s, 0" % t0, "v_mov_b32 %s, 0" % t1]
    def fold(self, acc, uq, normal=False):
        d = vr(acc, 16)
        a_, b_ = (vr(VQ), vr(uq)) if normal else (vr(uq), vr(VQ))
        return "%s %s, %s, %s, %s" % (MF, d, a_, b_, d)
    def h_body(self, a, P, so, imm):
        it = []
        for g in range(4):
            for j in range(4): it.append("v_mul_f32_e64 v%d, v%d, abs(v%d)" % (a + 4 * g + j, a + 4 * g + j, a + 4 * g + j))
            for j in range(2): it.append("v_cvt_pk_bf16_f32 v%d, v%d, v%d" % (P + 2 * g + j, a + 4 * g + 2 * j, a + 4 * g + 2 * j + 1))
            for j in range(2): it.append("v_pk_max_i16 v%d, v%d, 0" % (P + 2 * g + j, P + 2 * g + j))
            if g & 1:
                it += self.tagh(P + 4 * (g >> 1))
                it.append("buffer_store_dwordx4 %s, %s, %s, %s offen offset:%d sc1" % (vr(P + 4 * (g >> 1)), vL16, SWS, so, imm + (g >> 1) * 1024))
        return it
    def phi4(self, a, ri, tt):
        it = []
        for j in (0, 2): it.append("v_pk_fma_f32 %s, %s, %s" % (vr(a + j, 2), vr(a + j, 2), ri(j)))
        for j in (0, 2): it.append("v_pk_mul_f32 %s, %s, %s" % (vr(tt + j, 2), vr(a + j, 2), sLOG2))
        for j in range(4):
            it.append("v_exp_f32_e64 v%d, v%d clamp" % (tt + j, tt + j))
            it.append("v_max_f32 v%d, %s, v%d" % (a + j, sEPS6, a + j))
        for j in (0, 2): it.append("v_pk_add_f32 %s, %s, %s" % (vr(a + j, 2), vr(a + j, 2), vr(tt + j, 2)))
        return it
    def a_seq(self):
        seq = []
        sp = self.o.get("split", 8)
        for n in range(28 - sp): seq += [(1, n, 0), (1, n, 1)]
        for rbk in range(2): seq += [(1, n, rbk) for n in range(28 - sp, 28)]
        for rbk in range(2): seq += [(0, k, rbk) for k in range(8)]
        return seq
    def a_ins(self, i, sreg):
        ffn, n, rbk = self.a_seq()[i]
        k, base = (self.kord()[n], sAW) if ffn else (self.hord(n), sAO)
        return ((base, k >> 2), "s_add_u32 %s, %s, %d" % (sreg, base, (k >> 2) * 4096),
                "buffer_load_dwordx4 %s, %s, %s, %s offen offset:%d sc1" % (vr(AR + 4 * (i & 15)), vA2 if rbk else vL16, SWS, sreg, (k & 3) * 1024))
    def a_load(self, i, at):
        grp, setup, ins = self.a_ins(i, sAG)
        pre = []
        if grp != self.a_grp: pre.append(setup); self.a_grp = grp
        return (at, pre, ins, [("mark", "ald", i)])
    a_grp = None
    def a_check(self, n, mid=None, first=None):
        def f():
            while ("ald", 2 * n + 1) not in self.marks: self.vm_now([self.vq.pop(0)])
            a, b = AR + 4 * ((2 * n) & 15), AR + 4 * ((2 * n + 1) & 15)
            m = sMH if n < 28 else sMT
            chk = ["v_bitop3_b32 v%d, v%d, %s, %s bitop3:0x%x" % (r, r, t, m, XAND) for r, t in ((a, vT0A), (b, vT0A), (a + 1, vT1A), (b + 1, vT1A))]
            chk += ["v_or3_b32 v254, v%d, v%d, v%d" % (a, b, a + 1), "v_bitop3_b32 v254, v254, v%d, %s bitop3:0x%x" % (b + 1, m, ANDOR), "v_cmp_ne_u32 vcc, 0, v254"]
            def rl():
                out = []; grp = None; i = 2 * n
                while ("ald", i) in self.marks:
                    g, setup, ins = self.a_ins(i, "s3")
                    if g != grp: out.append(setup); grp = g
                    out.append(ins); i += 1
                return out
            self.retry(chk, rl, mid, first)
        return f
    def p2_mfmas(self, n):
        out = []
        seq = self.a_seq()
        for i in (2 * n, 2 * n + 1):
            ffn, m, rbk = seq[i]
            t = (m >> 1) if ffn else 14 + (m >> 1)
            assert ("ptr", t) in self.marks, (n, t)
            pb = self.pslot(t) + 8 * (m & 1)
            for cbk in range(2):
                d = vr((ACCO if ffn else ACCS) + 32 * rbk + 16 * cbk, 16)
                out.append("%s %s, %s, %s, %s" % (MF, d, ar(pb + 4 * cbk), vr(AR + 4 * (i & 15)), "0" if m == 0 else d))
        return out
    RVL = ["buffer_load_dwordx4 v[240:243], v14, %s, %s offen sc1" % (SWS, sRVO), "buffer_load_dwordx4 v[244:247], v14, %s, %s offen offset:512 sc1" % (SWS, sRVO)]
    def ex_addr(self):
        it = ["v_and_b32 v8, 31, v0", "v_lshrrev_b32 v9, 5, v0", "v_and_b32 v14, 7, v0",
              "v_xor_b32 v9, v9, v14", "v_lshlrev_b32 v9, 4, v9", "v_lshl_add_u32 v9, v8, 8, v9",
              "s_lshl_b32 %s, %s, 14" % (sq0, sWAVE), "v_add_u32 v2, %s, v9" % sq0]
        for g in range(1, 4): it.append("v_xor_b32 v%d, %d, v2" % (2 + g, g * 32))
        it += ["v_lshrrev_b32 v8, 3, v0", "v_lshlrev_b32 v9, 1, v14", "v_xor_b32 v9, v9, v8", "v_lshlrev_b32 v9, 4, v9",
               "v_lshl_add_u32 v9, v8, 8, v9", "s_lshl_b32 %s, %s, 11" % (sq0, sWAVE), "v_add_u32 v6, %s, v9" % sq0,
               "v_xor_b32 v7, 16, v6", "v_add_u32 v28, %d, v6" % XW, "v_add_u32 v29, %d, v7" % XW,
               "v_add_u32 v30, %d, v2" % XW,
               "v_lshlrev_b32 v9, 4, v14", "v_lshl_add_u32 v15, v8, 10, v9", "v_lshlrev_b32 v14, 4, v8",
               "s_lshl3_add_u32 %s, %s, %s" % (sq0, sRT, sWAVE), "s_lshl_b32 %s, %s, 13" % (sq1, sq0),
               "s_add_u32 %s, %s, %s" % (sOUT0, sq1, sBB), "s_add_u32 %s, %s, 32768" % (sOUT1, sOUT0),
               "s_lshl_b32 %s, %s, 7" % (sq0, sq0), "s_add_u32 %s, %s, %d" % (sRVO, sq0, RV)]
        ld = ["buffer_load_dwordx4 v[16:19], v15, %s, %s offen" % (SX, sOUT0),
              "buffer_load_dwordx4 v[20:23], v15, %s, %s offen" % (SX, sOUT1),
              "buffer_load_dwordx4 v[24:27], v9, %s, %s offen" % (SB2, sBB)] + self.RVL
        return it, ld
    def ex_write(self, acc, regs, rbks):
        it = []
        for rbk in rbks:
            for cbk in range(2):
                for g in range(4):
                    it.append("ds_write_b128 %s, %s offset:%d" % (regs[g], vr(acc + 32 * rbk + 16 * cbk + 4 * g), rbk * 8192 + cbk * 128))
        return it
    def silu_items(self, q):
        O = ACCO + 32 * q
        it = []
        for b in range(2):
            for w in range(4):
                it.append("ds_read_b128 %s, v%d offset:%d" % (vr(O + 16 * b + 4 * w), 6 + b, w * 16384 + q * 8192))
        for b in range(2):
            o0 = O + 16 * b; G = 224 + 8 * q + 4 * b
            b2 = lambda j: (10 if (j & 1) == 0 else 24) + 2 * b + (j >> 1)
            it.append(lambda o0=o0: self.e.wait(lg=self.e.pend[("v", o0 + 12)][1]))
            for j in range(4): it.append("v_add_f32 v%d, v%d, v%d" % (o0 + j, o0 + j, o0 + 4 + j))
            for j in range(4): it.append("v_add_f32 v%d, v%d, v%d" % (o0 + 8 + j, o0 + 8 + j, o0 + 12 + j))
            for j in range(4): it.append("v_add_f32 v%d, v%d, v%d" % (o0 + j, o0 + j, o0 + 8 + j))
            for j in range(4): it.append("v_fma_f32 v%d, v%d, v%d, v%d" % (o0 + j, o0 + j, 242 + 4 * q, b2(j)))
            for j in range(4): it.append("v_mul_f32 v%d, %s, v%d" % (o0 + 4 + j, sq2, o0 + j))
            for j in range(4): it.append("v_exp_f32 v%d, v%d" % (o0 + 4 + j, o0 + 4 + j))
            for j in range(4): it.append("v_add_f32 v%d, 1.0, v%d" % (o0 + 4 + j, o0 + 4 + j))
            for j in range(4): it.append("v_rcp_f32 v%d, v%d" % (o0 + 4 + j, o0 + 4 + j))
            for j in range(4): it.append("v_mul_f32 v%d, v%d, v%d" % (G + j, o0 + j, o0 + 4 + j))
        return it
    def fin_items(self, q):
        S = ACCO + 32 * q; X = 16 + 4 * q; Y = ACCS + 16 * q
        it = []
        for b in range(2):
            for w in range(4):
                it.append("ds_read_b128 %s, v%d offset:%d" % (vr(S + 16 * b + 4 * w), 28 + b, w * 16384 + q * 8192))
        for j in range(4):
            it.append("v_lshlrev_b32 v%d, 16, v%d" % (Y + 2 * j, X + j))
            it.append("v_and_b32 v%d, 0xffff0000, v%d" % (Y + 1 + 2 * j, X + j))
        for b in range(2):
            s0 = S + 16 * b
            it.append(lambda s0=s0: self.e.wait(lg=self.e.pend[("v", s0 + 12)][1]))
            for j in (0, 2): it.append("v_pk_add_f32 %s, %s, %s" % (vr(s0 + j, 2), vr(s0 + j, 2), vr(s0 + 4 + j, 2)))
            for j in (0, 2): it.append("v_pk_add_f32 %s, %s, %s" % (vr(s0 + 8 + j, 2), vr(s0 + 8 + j, 2), vr(s0 + 12 + j, 2)))
            for j in (0, 2): it.append("v_pk_add_f32 %s, %s, %s" % (vr(s0 + j, 2), vr(s0 + j, 2), vr(s0 + 8 + j, 2)))
            for j in (0, 2): it.append("v_pk_fma_f32 %s, %s, %s, %s" % (vr(Y + 4 * b + j, 2), vr(s0 + j, 2), vr(224 + 8 * q + 4 * b + j, 2), vr(Y + 4 * b + j, 2)))
        for j in range(4): it.append("v_cvt_pk_bf16_f32 v%d, v%d, v%d" % (Y + 8 + j, Y + 2 * j, Y + 1 + 2 * j))
        it.append("buffer_store_dwordx4 %s, v15, %s, %s offen %s" % (vr(Y + 8), SOUT, sOUT0 if q == 0 else sOUT1, self.o.get("outfl", "sc1")))
        return it
    def p2(self, nd, nt, na):
        e = self.e; o = self.o
        D = o.get("p2d", 14)
        q = []
        self.vq = [(0,) + x[1:] for x in self.vq]
        trat = {}; nt0 = nt; lag0 = o.get("lag0", 3); nextd = o.get("p2d0", 2)
        gapd = (o.get("p2dl", 18) - nextd) // max(1, 17 - nd)
        for t in (16, 17):
            if t < nd: trat[t] = 2 * (t - 16) + 4
        wo = ["v2", "v3", "v4", "v5"]; wsr = ["v30", "v8", "v9", "v14"]
        n0 = 28 - o.get("split", 8) // 2
        ea, el = self.ex_addr()
        hooks = {1: ea}
        rvchk = lambda: self.retry(["v_cmp_ne_u64 vcc, %s, v[240:241]" % sNONCE, "v_cmp_ne_u64 %s, %s, v[244:245]" % (sM1, sNONCE), "s_nop 0", "s_or_b64 vcc, vcc, %s" % sM1], self.RVL)
        hooks[21] = ([rvchk, "v_mul_f32 v242, v243, v243", "v_mul_f32 v246, v247, v247", "v_xor_b32 v8, 32, v30", "v_xor_b32 v9, 64, v30", "v_xor_b32 v14, 96, v30", "s_mov_b32 %s, 0xbfb8aa3b" % sq2]
                         + sum([["v_lshlrev_b32 v%d, 16, v%d" % (10 + j, 24 + j), "v_and_b32 v%d, 0xffff0000, v%d" % (24 + j, 24 + j)] for j in range(4)], []))
        wr = {}
        for base, acc, regs, rbk in ((n0, ACCO, wo, 0), (28, ACCO, wo, 1), (32, ACCS, wsr, 0)):
            w = self.ex_write(acc, regs, [rbk])
            for k in range(4): wr[base + k] = w[2 * k:2 * k + 2]
        hooks[n0 + 4] = [self.bar] + self.silu_items(0)
        hooks[32] = [self.bar] + self.silu_items(1)
        self.a_check(0)()
        for n in range(36):
            extra = []
            if nt < 18 and ("pdma", nt) in self.marks and (nt < 16 or n >= 2 * (nt - 16) + 2) and n >= trat.get(nt, lag0 + 2 * (nt - nt0)):
                extra += self.piece_tr(nt); nt += 1
            while na < 72 and na < 2 * n + D:
                self.vq.append(self.a_load(na, n)); na += 1
            if nd < 18 and nd - nt < 4 and n >= nextd:
                self.vq += self.piece_dma(nd, n); trat[nd] = n + o.get("p2lag", 7); nd += 1; nextd = n + gapd
            if 0 <= n - o.get("rl0", 5) < 5: self.vq.append((n, [], el[n - o.get("rl0", 5)], []))
            if n == 21: assert ("pdma", 17) in self.marks
            q += hooks.get(n, [])
            r = 12 if n < n0 + 4 else (max(12, -(-76 // (28 - n0))) if n < 32 else 22)
            if n in (n0 + 4, 32): r += 6
            take = q[:r]; q = q[r:]
            if n in (n0 + 4, 32): take = take[:9] + wr.get(n, []) + take[9:]
            elif n in wr: take = take[:len(take) // 3] + [wr[n][0]] + take[len(take) // 3:2 * len(take) // 3] + [wr[n][1]] + take[2 * len(take) // 3:]
            extra += take
            if o.get("stamps") == 4 and 0 <= n - o.get("p0", 0) < 13: self.stamp(49 + n - o.get("p0", 0), force=True)
            mf = self.p2_mfmas(n)
            per = spread(len(extra), 4)
            cuts = [sum(per[:i]) for i in range(5)]
            def gp(i):
                ex = extra[cuts[i]:cuts[i + 1]]
                self.gap(n, [], ex, [], (0 if self.has_vm(ex) else 1) + (1 if len(self.vq) > 5 else 0))
            self.run(mf[0]); gp(0); self.run(mf[1]); gp(1)
            if n < 35: self.a_check(n + 1, mf[3], [mf[2], lambda: gp(2)])()
            else: self.run(mf[2]); gp(2); self.run(mf[3])
            gp(3)
            if (n & 3) == 3: self.stamp(24 + (n >> 2))
        assert not self.vq and nt == 18
        self.run(q)
        self.bar()
        w1 = self.ex_write(ACCS, wsr, [1]); f0 = self.fin_items(0)
        self.run(f0[:8])
        f0 = f0[8:]
        for k in range(8):
            self.run(w1[k]); self.run(f0[:4]); f0 = f0[4:]
        self.run(f0)
        self.bar()
        self.stamp(33)
        self.run(self.fin_items(1))
        self.stamp(34, last=True)
        e("s_endpgm")
    def base_front(self):
        o = self.o
        f = {}
        self.trat = {}; self.late = []
        def add(n, g): f.setdefault(n, []).append(g)
        ent = []
        for c in range(2, 8): ent.append(((c - 2) * 3.2, self.dma_a(c, max(0, 4 * (c - 4) + 3))))
        if o.get("tg", 13) >= 0: ent.append((o.get("tg", 13), self.touch_global(o.get("tg", 13))))
        for r in range(o.get("ntl", 0)):
            at = o.get("tl0", 7) + r * o.get("tlp", 5)
            ent.append((at, self.touch_l2(r, at)))
        for c in range(8, 16):
            at = 19 + 4 * ((c - 8) >> 1)
            ent.append((at + 0.5, self.dma_b1(c, at)))
        tha = o.get("tha" + self.cur.lower(), -1)
        if tha >= 0: ent.append((tha, self.touch_ha(tha)))
        if o.get("ct", -1) >= 0: ent.append((o.get("ct", -1), self.touch_code("L_mid" + self.cur, o.get("ct", -1))))
        if o.get("ct2", -1) >= 0: ent.append((o.get("ct2", -1), self.touch_code("L_p2" + self.cur, o.get("ct2", -1))))
        self.ent = ent
        nissue, ncheck = self.get_nonce()
        add(o.get("nis", 4), nissue)
        for x in ncheck: add(o.get("nck", 10), x)
        for x in self.stats_store(): add(o.get("nck", 10) + 1, x)
        ent.append((o.get("stl", 26), self.stats_load(o.get("stl", 26))))
        add(30, self.cs_write(0, CSAACC, 4))
        bars = {}
        for c in range(7): bars[4 * c + 3] = ([("waitvm", "chunk", c + 1)], 4 * c + 4)
        bars[31] = ([("waitvm", "chunk", 9), ("waitlg", "csw", 0)], 32)
        for c in (9, 11, 13): bars[4 * c + 2] = ([("waitvm", "chunk", c + 2), ("waitlg", "frag", 4 * c + 3)], 4 * c + 4)
        return f, add, bars
    def pieces(self, add, sched):
        for t, (d, r) in enumerate(sched):
            self.ent.append((d + 0.7, self.piece_dma(t, d)))
            if r is not None and r >= 0: self.trat.setdefault(r, []).append(t)
        self.nd_all = len(sched)
        return len(sched), sum(1 for d, r in sched if r is not None)
    def close_vq(self):
        self.ent.sort(key=lambda x: x[0])
        self.vq = []
        for a, x in self.ent: self.vq += x
    def path_B(self):
        e = self.e; o = self.o
        e.label("L_typeB")
        self.cur = "B"
        e("v_and_b32 %s, 31, v0" % vT)
        e("v_lshlrev_b32 %s, 1, %s" % (vT, vT))
        for cb in range(6): e("buffer_load_ushort v%d, %s, %s, %s offen offset:%d" % (B1V + cb, vT, SB1, st4, cb * 64))
        e("buffer_load_ushort v%d, %s, %s, %s offen" % (B1V + 6, vT, SB1, sHCOL))
        front, add, bars = self.base_front()
        UQ = [192, 196, 200, 204]; P = [208, 216]; TMP = 208
        ev = o.get("every", 12)
        def epiA():
            it = self.cs_reads(0, 208) + self.stats_use() + self.cs_sum(4, 208)
            it += zipper(*[self.ufrag(i, UQ[i], B1V + i) for i in range(2)]) + [self.fold(ACCA + 16 * i, UQ[i]) for i in range(2)]
            it += zipper(*[self.ufrag(i, UQ[i], B1V + i) for i in range(2, 4)]) + [self.fold(ACCA + 16 * i, UQ[i]) for i in range(2, 4)]
            for i in range(4): it += self.h_body(ACCA + 16 * i, P[(i + 1) & 1], sHA0 if i < 2 else sHA1, (i & 1) * 2048)
            return it
        def epiB1():
            it = self.cs_reads(1, TMP) + self.cs_sum(2, TMP) + zipper(self.ufrag(0, UQ[0], B1V + 4), self.ufrag(1, UQ[1], B1V + 5))
            it += [self.fold(ACCB, UQ[0]), self.fold(ACCB + 16, UQ[1])]
            for t in (8, 9)[:0]: it += self.piece_tr(t)
            for i in range(2): it += self.h_body(ACCB + 16 * i, P[i], sHB1, i * 2048)
            return it
        add(61, self.cs_write(1, CSBACC, 2))
        bars[62] = ([("waitvm", "chunk", 23), ("waitlg", "csw", 1)], 64)
        add(79, self.cs_write(2, CSBACC + 8, 1))
        for j in range(8): self.ent.append((40 if j < 4 else 48, self.dma_b2(j, 40 if j < 4 else 48)))
        nd, nt = self.pieces(add, eval(o.get("schb", "[(22,33),(24,35),(28,38),(32,42),(34,45),(37,48),(40,51),(44,55),(47,66),(50,68),(53,70),(57,72),(67,None)]")))
        na = 14
        for k in range(na): self.ent.append((o.get("pac", 66) + 0.01 * k, [self.a_load(k, o.get("pac", 66))]))
        self.close_vq()
        self.gemm1("B", 80, front, {}, bars, {32: epiA(), 64: epiB1()}, lambda n: o.get("rb1", 10) if n < 64 else o.get("rb2", 10))
        self.bar()
        it = self.cs_reads(2, TMP) + self.cs_sum(1, TMP) + self.ufrag(0, UQ[0], B1V + 6) + [self.fold(ACCB + 32, UQ[0])]
        it += self.h_body(ACCB + 32, P[0], sHB2, 0)
        self.block(99, it, ev)
        self.stamp(23)
        self.p2(*self.left(), na)
    def path_A(self):
        e = self.e; o = self.o
        front, add, bars = self.base_front()
        RI, PK, VV, ONES, TT = 192, 232, 240, 128, 132
        UQ = [208, 212, 216, 220]
        ev = o.get("every", 12)
        def epiKV():
            it = self.cs_reads(0, 208) + self.stats_use()
            it += ["s_lshl_b32 %s, %s, 8" % (sq0, sWAVE), "s_add_u32 %s, %s, %d" % (sq0, sq0, RS),
                   "v_and_b32 %s, 31, v0" % vA0, "v_lshl_add_u32 %s, %s, 2, %s" % (vA0, vA0, sq0), "ds_write_b32 %s, %s" % (vA0, vRI),
                   "v_lshrrev_b32 %s, 5, v0" % vA1, "v_lshl_add_u32 %s, %s, 4, %s" % (vA1, vA1, sq0)]
            it += ["ds_read_b128 %s, %s offset:%d" % (vr(RI + 4 * g), vA1, g * 32) for g in range(4)]
            it += self.cs_sum(4, 208)
            it += zipper(self.ufrag(0, UQ[0], None), self.ufrag(2, UQ[1], None))
            it += [self.fold(ACCA, UQ[0], True), self.fold(ACCA + 32, UQ[1], True)]
            it += zipper(self.ufrag(1, UQ[2], None), self.ufrag(3, UQ[3], None))
            it += [self.fold(ACCA + 16, UQ[2], True), self.fold(ACCA + 48, UQ[3], True)]
            it += ["s_lshl_b32 %s, %s, 12" % (sq0, sWAVE), "s_add_u32 %s, %s, %d" % (sq0, sq0, KVX), "v_add_u32 v136, %s, %s" % (sq0, vL16),
                   "s_lshl_b32 %s, %s, 8" % (sq0, sWAVE), "s_add_u32 %s, %s, %d" % (sq0, sq0, ZX),
                   "v_and_b32 v137, 31, v0", "v_lshl_add_u32 v137, v137, 2, %s" % sq0]
            radr = ["v_and_b32 v138, 15, v0", "v_bfe_u32 v139, v0, 4, 1", "v_lshl_add_u32 v138, v139, 5, v138",
                    "s_and_b32 %s, %s, 1" % (sq0, sWAVE), "s_lshl_b32 %s, %s, 4" % (sq0, sq0), "v_add_u32 v138, %s, v138" % sq0,
                    "v_lshlrev_b32 v138, 4, v138", "v_lshrrev_b32 v139, 5, v0", "v_lshl_add_u32 v138, v139, 10, v138",
                    "s_lshr_b32 %s, %s, 1" % (sq0, sWAVE), "s_lshl_b32 %s, %s, 11" % (sq0, sq0), "s_add_u32 %s, %s, %d" % (sq0, sq0, KVX),
                    "v_add_u32 v138, %s, v138" % sq0,
                    "v_and_b32 v140, 48, v0", "s_lshl_b32 %s, %s, 6" % (sq0, sWAVE), "s_add_u32 %s, %s, %d" % (sq0, sq0, ZX),
                    "v_add_u32 v139, %s, v140" % sq0,
                    "s_lshl4_add_u32 %s, %s, %s" % (sq0, sHEAD, sRB),
                    "s_lshl_b32 %s, %s, 10" % (sq1, sq0), "s_add_u32 %s, %s, %d" % (sq1, sq1, KVP),
                    "s_lshl_b32 %s, %s, 7" % (sq2, sq0), "s_add_u32 %s, %s, %d" % (sq2, sq2, ZP)]
            posts = []
            for p in range(2):
                ak = ACCA + 16 * p; av = ACCA + 32 + 16 * p
                for g in range(4):
                    if 0 <= 4 * p + g - o.get("btr0", 0) < 3: it.append(self.try_tr(4 * p + g - o.get("btr0", 0)))
                    it += self.phi4(ak + 4 * g, lambda j: "%s, %s" % (vr(RI + 4 * g + j, 2), sEPS2), TT)
                    for j in (0, 2): it.append("v_pk_mul_f32 %s, %s, %s" % (vr(av + 4 * g + j, 2), vr(av + 4 * g + j, 2), vr(RI + 4 * g + j, 2)))
                    for j in range(2): it.append("v_cvt_pk_bf16_f32 v%d, v%d, v%d" % (PK + 2 * g + j, ak + 4 * g + 2 * j, ak + 4 * g + 2 * j + 1))
                    for j in range(2): it.append("v_cvt_pk_bf16_f32 v%d, v%d, v%d" % (VV + 2 * g + j, av + 4 * g + 2 * j, av + 4 * g + 2 * j + 1))
                it.append("%s %s, %s, %s, 0" % (MF, vr(ak, 16), vr(PK), vr(VV)))
                it.append("%s %s, %s, %s, 0" % (MS, vr(av), vr(SEL), vr(PK)))
                it.append("%s %s, %s, %s, %s" % (MF, vr(ak, 16), vr(PK + 4), vr(VV + 4), vr(ak, 16)))
                it.append("%s %s, %s, %s, %s" % (MS, vr(av), vr(SEL), vr(PK + 4), vr(av)))
                post = []
                for i in range(8): post.append("v_cndmask_b32 v%d, v%d, v%d, %s" % (ak + i, ak + i, ak + 8 + i, sMASK))
                for part in range(2): post.append("ds_write_b128 v136, %s offset:%d" % (vr(ak + 4 * part), p * 2048 + part * 1024))
                post.append("ds_write_b32 v137, v%d offset:%d" % (av, p * 128))
                if p == 0: it += radr + post
                else: it += [self.try_tr(3), "s_nop 3"] + post
            it.append(self.bar)
            T = 192
            for w in range(4): it.append("ds_read_b128 %s, v138 offset:%d" % (vr(T + 4 * w), w * 4096))
            for w in range(4): it.append("ds_read_b128 %s, v139 offset:%d" % (vr(T + 16 + 4 * w), w * 256))
            for b in (T, T + 16):
                for j in (0, 2): it.append("v_pk_add_f32 %s, %s, %s" % (vr(b + j, 2), vr(b + j, 2), vr(b + 4 + j, 2)))
                for j in (0, 2): it.append("v_pk_add_f32 %s, %s, %s" % (vr(b + 8 + j, 2), vr(b + 8 + j, 2), vr(b + 12 + j, 2)))
                for j in (0, 2): it.append("v_pk_add_f32 %s, %s, %s" % (vr(b + j, 2), vr(b + j, 2), vr(b + 8 + j, 2)))
                it += self.tag32(b)
            it.append("buffer_store_dwordx4 %s, %s, %s, %s offen sc1" % (vr(T), vL16, SWS, sq1))
            it.append(["s_mov_b32 s84, 0x00010001", "s_mov_b32 s85, 0x00010001", "s_mov_b64 exec, %s" % sM1,
                       "buffer_store_dwordx4 %s, v140, %s, %s offen sc1" % (vr(T + 16), SWS, sq2), "s_mov_b64 exec, -1"])
            self.block(32, it, ev)
        add(61, self.cs_write(1, CSBACC, 2))
        bars[63] = ([lambda: e.wait(lg=e.lg_seq)], None)
        nd, nt = self.pieces(add, eval(o.get("scha", "[(22,-1),(24,-1),(28,-1),(32,-1),(32,34),(32,36),(32,38),(33,41),(35,43),(37,45),(39,47),(42,50),(44,53),(46,57),(48,61),(51,-1),(58,None),(60,None)]")))
        Q = [32 + 4 * i for i in range(16)]; Z = 240
        kvl = []
        kvl.append((["s_lshl_b32 %s, %s, 11" % (sZB, sHEAD), "s_add_u32 %s, %s, %d" % (sZB, sZB, ZP),
                     "v_and_b32 v244, 15, v0", "v_lshlrev_b32 v244, 7, v244", "v_and_b32 v245, 48, v0", "v_add_u32 v244, v244, v245",
                     "s_lshl_b32 %s, %s, 14" % (sKVB, sHEAD), "s_add_u32 %s, %s, %d" % (sKVB, sKVB, KVP)],
                    "buffer_load_dwordx4 %s, v244, %s, %s offen sc1" % (vr(Z), SWS, sZB)))
        for r in range(16):
            kvl.append((["s_add_u32 %s, %s, %d" % (st3, sKVB, (r >> 2) * 4096)] if (r & 3) == 0 else [],
                        "buffer_load_dwordx4 %s, %s, %s, %s offen offset:%d sc1" % (vr(Q[r]), vL16, SWS, st3, (r & 3) * 1024)))
        kat = o.get("kvl", 54)
        self.ent.append((kat, [(kat, p, i, []) for p, i in kvl]))
        self.close_vq()
        self.gemm1("A", 64, front, {32: epiKV}, bars)
        self.stamp(19)
        ts = lambda k: self.stamp(k, force=True) if o.get("tstamp") else None
        ts(35)
        UQ = [192, 196]; TT = 200; TMP = 208
        it = self.cs_reads(1, TMP) + self.cs_sum(2, TMP) + zipper(self.ufrag(0, UQ[0], None), self.ufrag(1, UQ[1], None))
        it += [self.fold(ACCB, UQ[0]), self.fold(ACCB + 16, UQ[1])]
        self.block(99, it, 6)
        while any(x[2] == kvl[16][1] for x in self.vq):
            k = [i for i, x in enumerate(self.vq) if all(not (isinstance(y, tuple) and y[0] == "waitlg") or (y[1], y[2]) in self.marks for y in x[1])][0]
            if k:
                self.vq = self.vq[4:] + self.vq[:4]; continue
            self.vm_now([self.vq.pop(0)])
        ts(36)
        chk = ["v_xor_b32 v%d, %s, v%d" % (Z, sE, Z), "v_xor_b32 v%d, %s, v%d" % (Z + 1, sH0, Z + 1), "v_or_b32 v254, v%d, v%d" % (Z, Z + 1)]
        for r in range(16):
            chk += ["v_xor_b32 v%d, %s, v%d" % (Q[r], sE, Q[r]), "v_xor_b32 v%d, %s, v%d" % (Q[r] + 1, vT1B, Q[r] + 1),
                    "v_or3_b32 v254, v254, v%d, v%d" % (Q[r], Q[r] + 1)]
        chk += ["v_and_b32 v254, 3, v254", "v_cmp_ne_u32 vcc, 0, v254"]
        qe = []
        for cb in range(2):
            a = ACCB + 16 * cb
            for g in range(4):
                qe += self.phi4(a + 4 * g, lambda j: "v[228:229], %s op_sel_hi:[1,0,1]" % sEPS2, TT)
                for j in range(2): qe.append("v_cvt_pk_bf16_f32 v%d, v%d, v%d" % (PQ + 8 * cb + 2 * g + j, a + 4 * g + 2 * j, a + 4 * g + 2 * j + 1))
        h = o.get("qsplit", 64)
        self.run(qe[:h]); qe = qe[h:]
        ts(37)
        self.retry(chk, [kvl[0][1]] + sum([x[0] + [x[1]] for x in kvl[1:]], []))
        ts(38)
        red = []
        stepw = 1
        while stepw < 16:
            for r in range(0, 16, 2 * stepw):
                for j in (0, 2): red.append("v_pk_add_f32 %s, %s, %s" % (vr(Q[r] + j, 2), vr(Q[r] + j, 2), vr(Q[r + stepw] + j, 2)))
            stepw *= 2
        red += ["v_cvt_pk_bf16_f32 v246, v%d, v%d" % (Q[0], Q[0] + 1), "v_cvt_pk_bf16_f32 v247, v%d, v%d" % (Q[0] + 2, Q[0] + 3)]
        zr = []
        for sh in (8, 4, 2, 1):
            for j in range(4): zr.append("v_add_f32_dpp v%d, v%d, v%d row_ror:%d row_mask:0xf bank_mask:0xf" % (Z + j, Z + j, Z + j, sh))
        zr += ["v_and_b32 v244, 15, v0", "v_bfe_u32 v245, v0, 4, 1", "v_lshl_add_u32 v244, v245, 5, v244", "v_lshlrev_b32 v244, 4, v244",
               "v_lshrrev_b32 v245, 5, v0", "v_lshl_add_u32 v244, v245, 3, v244",
               "s_lshl_b32 %s, %s, 10" % (sq0, sWAVE), "s_add_u32 %s, %s, %d" % (sq0, sq0, KVF), "v_add_u32 v244, %s, v244" % sq0,
               "v_cvt_pk_bf16_f32 v%d, v%d, v%d" % (Z, Z, Z + 1), "v_cvt_pk_bf16_f32 v%d, v%d, v%d" % (Z + 1, Z + 2, Z + 3),
               "ds_write_b64 v244, %s offset:256" % vr(Z, 2), "ds_write_b64 v244, v[246:247]", "v_add_u32 v244, %d, %s" % (KVF, vL16)]
        self.run(red)
        na = 14
        self.vq = [self.a_load(k, 0) for k in range(na)] + self.vq
        self.block(99, zr + qe, 6)
        ts(39)
        self.bar()
        ts(40)
        it = ["ds_read_b128 %s, v244 offset:%d" % (vr(144 + 4 * hh), hh * 1024) for hh in range(4)]
        it += ["s_lshl_b32 %s, %s, 12" % (sq0, sIJ), "s_add_u32 %s, %s, %d" % (sq0, sq0, 112 * 1024), "s_add_u32 %s, %s, %s" % (sq0, sq0, sHST)]
        acc = [96, 112, 160, 176]
        for hh in range(4): it.append("%s %s, %s, %s, 0" % (MF, vr(acc[hh], 16), vr(144 + 4 * hh), vr(PQ + 4 * hh)))
        for t in (self.late + [15])[:2]: it.append(lambda t=t: self.run(self.piece_tr(t)) if ("pdma", t) in self.marks else None)
        for hh in range(4):
            a = acc[hh]
            it.append("v_add_f32 v%d, %s, v%d" % (a + 8, sEPS6, a + 8))
            it.append("v_rcp_f32 v%d, v%d" % (a + 8, a + 8))
            for j in (0, 2, 4, 6): it.append("v_pk_mul_f32 %s, %s, %s op_sel_hi:[1,0]" % (vr(a + j, 2), vr(a + j, 2), vr(a + 8, 2)))
            for j in range(4): it.append("v_add_u32 v%d, 0x10000, v%d" % (a + j, a + j))
            for j in range(4): it.append("v_and_b32 v%d, 0xfffe0000, v%d" % (a + j, a + j))
            for j in range(4): it.append("v_cvt_pk_bf16_f32 v%d, v%d, v%d" % (224 + 4 * hh + j, a + 2 * j, a + 2 * j + 1))
            it += self.tag16(224 + 4 * hh)
            it.append("buffer_store_dwordx4 %s, %s, %s, %s offen offset:%d sc1" % (vr(224 + 4 * hh), vL16, SWS, sq0, hh * 1024))
        self.block(99, it, 6)
        for k in range(41, 49): ts(k)
        self.stamp(23)
        self.p2(*self.left(), na)
    def build(self):
        e = self.e
        self.prologue()
        snap = e.snapshot(); marks = dict(self.marks); ps = self.pend_stamp
        self.path_A()
        slow = self.slow
        self.slow = []
        e.restore(snap); self.marks = dict(marks); self.pend_stamp = ps; self.a_grp = None
        self.path_B()
        e.label("L_exit")
        e.raw("\ts_endpgm")
        e.label("L_end")
        for s in slow + self.slow: e.raw(s)
        head = open("cdna_kernels/%s.s.ref" % NAME).read().split("; Override launch")[0]
        out = head
        out += "; @launch grid=(256,1,1) block=(256,1,1) lds=%d\n" % LDS_BYTES
        out += '.amdgcn_target "amdgcn-amd-amdhsa--gfx950"\n.text\n.globl %s_kernel\n.p2align 8\n.type %s_kernel,@function\n%s_kernel:\n' % (NAME, NAME, NAME)
        out += e.text()
        out += '.section .rodata,"a"\n.p2align 6\n.amdhsa_kernel %s_kernel\n' % NAME
        out += "  .amdhsa_next_free_vgpr 512\n  .amdhsa_next_free_sgpr 102\n  .amdhsa_accum_offset 256\n  .amdhsa_group_segment_fixed_size 0\n"
        out += "  .amdhsa_kernarg_size 88\n  .amdhsa_user_sgpr_count 2\n  .amdhsa_user_sgpr_kernarg_segment_ptr 1\n  .amdhsa_system_sgpr_workgroup_id_x 1\n.end_amdhsa_kernel\n"
        return out

if __name__ == "__main__":
    opt = dict(split=12, rb1=8, noprun=8, tg=19.6, slowa=22, slowb=22, stl=19.55, btr0=3)
    out = "cdna_kernels/%s.s" % NAME
    for a in sys.argv[1:]:
        k, v = a.split("=")
        if k == "out": out = v
        else:
            try: v = int(v)
            except ValueError:
                try: v = float(v)
                except ValueError: pass
            opt[k] = v
    g = Gen(opt)
    s = g.build()
    if opt.get("align", 1):
        from align import align
        s, nw = align(s, opt.get("minrun", 3), opt.get("noprun", 0))
    open(out, "w").write(s)
    print("written", out, len(s.splitlines()), "lines", {k: v for k, v in sorted(g.e.count.items(), key=lambda x: -x[1])[:8]})
```
